```python
import torch

def _softmax(x, axis=-1):
    return torch.softmax(x, dim=axis)
def _gelu(x):
    return torch.nn.functional.gelu(x, approximate="tanh")
def _silu(x):
    return torch.nn.functional.silu(x)
def _sigmoid(x):
    return torch.sigmoid(x)
def _layernorm(x, axis=-1, eps=1e-5):
    m = x.mean(dim=axis, keepdim=True)
    v = x.var(dim=axis, keepdim=True, unbiased=False)
    return (x - m) / torch.sqrt(v + eps)
def _scatter_add(tgt, idx, src, axis=0):
    return tgt.clone().index_add_(axis, idx, src)
def _segment_sum(src, seg, n):
    out = torch.zeros((n,) + src.shape[1:], dtype=src.dtype)
    return out.index_add_(0, seg, src)
def _pad(x, pw):
    flat = tuple(v for pair in reversed(pw) for v in pair)
    return torch.nn.functional.pad(x, flat)

kernel_name = 'sequential_preLN__ssm_conv_s4__glu_gated_bilinear__prompt'

def setup_inputs():

    _w = (lambda a: (lambda t: t.to(torch.bfloat16) if t.is_floating_point() else t)(torch.as_tensor(a)))
    def _A_setup():
        B, L, D, N = 1, 2048, 576, 128
        A_re = -(lambda _x: torch.exp(torch.as_tensor(_x)))((lambda *s: torch.randn(*s, dtype=torch.bfloat16) * 3.2)(D, N))
        A_im = torch.pi * (lambda *s: torch.randn(*s, dtype=torch.bfloat16) * 0.05)(D, N)
        B_re = (lambda *s: torch.randn(*s, dtype=torch.bfloat16) * 0.1)(D, N)
        B_im = (lambda *s: torch.randn(*s, dtype=torch.bfloat16) * 0.1)(D, N)
        C_re = (lambda *s: torch.randn(*s, dtype=torch.bfloat16) * 0.1)(D, N)
        C_im = (lambda *s: torch.randn(*s, dtype=torch.bfloat16) * 0.1)(D, N)
        log_dt = (lambda *s: torch.randn(*s, dtype=torch.bfloat16) * 0.05)(D) * 0.5 - 4.0
        Dskip = (lambda *s: torch.randn(*s, dtype=torch.bfloat16) * 0.05)(D)
        return {
            "u": _w((lambda *s: torch.randn(*s, dtype=torch.bfloat16) * 0.05)(B, L, D)),
            "A_re": _w(A_re),
            "A_im": _w(A_im),
            "B_re": _w(B_re),
            "B_im": _w(B_im),
            "C_re": _w(C_re),
            "C_im": _w(C_im),
            "log_dt": _w(log_dt),
            "Dskip": _w(Dskip),
        }
    _A_in = _A_setup()

    def _B_setup():
        B, S, D, F = 1, 2048, 576, 4608
        return {
            "x": _w((lambda *s: torch.randn(*s, dtype=torch.bfloat16) * 0.05)(B, S, D)),
            "w_gate": _w((lambda *s: torch.randn(*s, dtype=torch.bfloat16) * 0.4)(D, F) * (D ** -0.5)),
            "w_up": _w((lambda *s: torch.randn(*s, dtype=torch.bfloat16) * 0.4)(D, F) * (D ** -0.5)),
            "w_down": _w((lambda *s: torch.randn(*s, dtype=torch.bfloat16) * 0.4)(F, D) * (F ** -0.5)),
        }
    _B_in = _B_setup()

    return {
        "A_u": _A_in["u"],
        "A_A_re": _A_in["A_re"],
        "A_A_im": _A_in["A_im"],
        "A_B_re": _A_in["B_re"],
        "A_B_im": _A_in["B_im"],
        "A_C_re": _A_in["C_re"],
        "A_C_im": _A_in["C_im"],
        "A_log_dt": _A_in["log_dt"],
        "A_Dskip": _A_in["Dskip"],
        "B_x": _B_in["x"],
        "B_w_gate": _B_in["w_gate"],
        "B_w_up": _B_in["w_up"],
        "B_w_down": _B_in["w_down"],
    }

def reference(A_u, A_A_re, A_A_im, A_B_re, A_B_im, A_C_re, A_C_im, A_log_dt, A_Dskip, B_x, B_w_gate, B_w_up, B_w_down):
    def _A_ref(u, A_re, A_im, B_re, B_im, C_re, C_im, log_dt, Dskip):
        Bsz, L, D = u.shape
        dt = torch.exp(log_dt)[:, None]
        A = A_re + 1j * A_im
        Bc = B_re + 1j * B_im
        Cc = C_re + 1j * C_im
        logdA = dt * A
        dB = dt * Bc
        l = (lambda x, dt: x.to(dt))(torch.arange(L), A_re.dtype)
        P = torch.exp(logdA[:, :, None] * l[None, None, :])
        K = torch.einsum("dn,dnl,dn->dl", Cc, P, dB).real
        L2 = 2 * L
        Kp = _pad(K, ((0, 0), (0, L)))
        up = (lambda x, *d: x.permute(*d))(u, 0, 2, 1)
        up = _pad(up, ((0, 0), (0, 0), (0, L)))
        Kf = (lambda x, axes=(-2,-1): torch.fft.rfft2(x.float(), dim=axes))(Kp[:, None, :], axes=(-2, -1))
        Uf = (lambda x, axes=(-2,-1): torch.fft.rfft2(x.float(), dim=axes))(up[:, :, None, :], axes=(-2, -1))
        Yf = Uf * Kf[None, :, :, :]
        y = (lambda x, s, axes=(-2,-1): torch.fft.irfft2(x, s=s, dim=axes).to(torch.bfloat16))(Yf, (1, L2), axes=(-2, -1))[:, :, 0, :L]
        y = (lambda x, *d: x.permute(*d))(y, 0, 2, 1) + u * Dskip[None, None, :]
        return y

    def _B_ref(x, w_gate, w_up, w_down):
        g = torch.einsum("bsd,df->bsf", x, w_gate)
        u = torch.einsum("bsd,df->bsf", x, w_up)
        h = g * u
        return torch.einsum("bsf,fd->bsd", h, w_down)

    x = A_u
    h = x + _A_ref(_layernorm(x, axis=-1), A_A_re, A_A_im, A_B_re, A_B_im, A_C_re, A_C_im, A_log_dt, A_Dskip)
    h2 = h + _B_ref(_layernorm(h, axis=-1), B_w_gate, B_w_up, B_w_down)
    return h2
```

```python
import sys, struct
sys.path.insert(0, "tools")
from asmgen import Asm, kernel_header, kernel_desc
import hazard

WS_UX   = 0x0000000
WS_KT   = 0x0480000
WS_HT   = 0x0900000
WS_CS   = 0x0B40000
WS_FLAG = 0x0B60000
WS_WP1  = 0x0C00000
WS_WP2  = 0x1620000
WS_HP   = 0x1B40000
WS_PART = 0x2D40000
WS_SIZE = 0x10000000

def f32(x):
    return "0x%08x" % struct.unpack("<I", struct.pack("<f", x))[0]

def vr(b, n=1, k="v"):
    return "%s%d" % (k, b) if n == 1 else "%s[%d:%d]" % (k, b, b+n-1)

def srd(a, s, base, nbytes):
    a.e("s_mov_b32 s%d, s%d", s, base)
    a.e("s_and_b32 s%d, s%d, 0xffff", s+1, base+1)
    a.e("s_mov_b32 s%d, 0x%x", s+2, nbytes)
    a.e("s_mov_b32 s%d, 0x20000", s+3)

def finish(a, name, vgpr, sgpr=96, accum=None, verbose=False):
    lines, n = hazard.fix_fast(a.lines, verbose)
    return "\n".join(lines) + "\n" + kernel_desc(name, vgpr, sgpr, accum)

def cmul(a, d, x, y):
    a.e("v_pk_mul_f32 %s, %s, %s op_sel_hi:[1,0]", vr(d,2), vr(x,2), vr(y,2))
    a.e("v_pk_fma_f32 %s, %s, %s, %s op_sel:[1,1,0] op_sel_hi:[0,1,1] neg_lo:[1,0,0]", vr(d,2), vr(x,2), vr(y,2), vr(d,2))

class Q:
    def __init__(self, a, name, maxv):
        self.a = a; self.name = name; self.maxv = maxv; self.q = []; self.done = 0
    def push(self, tag): self.q.append(tag)
    def count(self, tags):
        if not isinstance(tags, (list, set)): tags = [tags]
        idx = [i for i, t in enumerate(self.q) if t in tags]
        if not idx: return None
        last = max(idx)
        if last < self.done: return None
        return len(self.q) - 1 - last
    def mark(self, n): self.done = max(self.done, len(self.q) - n)
    def wait(self, tags):
        n = self.count(tags)
        if n is None: return
        n = min(n, self.maxv)
        self.a.e("s_waitcnt %s(%d)", self.name, n); self.mark(n)
    def wait_all(self):
        self.a.e("s_waitcnt %s(0)", self.name); self.mark(0)

def interleave(anchors, fillers, per=2, start=0):
    f = list(fillers)
    for i, m in enumerate(anchors):
        m()
        k = 0
        while f and k < per and i >= start:
            x = f[0]
            if isinstance(x, tuple):
                if i >= x[1]: f.pop(0); continue
                break
            f.pop(0)
            r = x()
            k += 1 if r is None else r
    for x in f:
        if not isinstance(x, tuple): x()
    return len([x for x in f if not isinstance(x, tuple)])
```

```python
from common import *
import math
NKG = 576; NLN = 256
K1_LDS = 53*544 + 16 + 2048
def gen_k1(name="prep_kernel"):
    a = Asm()
    kernel_header(a, name)
    a.e("s_load_dwordx16 s[8:23], s[0:1], 0")
    a.e("s_load_dwordx2 s[24:25], s[0:1], 120")
    a.e("s_cmp_ge_u32 s2, %d", NKG)
    a.e("s_cbranch_scc1 %s_ln", name)
    a.e("s_lshl_b32 s3, s2, 8")
    a.e("v_lshl_add_u32 v1, v0, 1, s3")
    a.e("s_lshl_b32 s4, s2, 1")
    a.e("v_mov_b32 v2, s4")
    a.e("s_waitcnt lgkmcnt(0)")
    a.e("global_load_ushort v10, v2, s[22:23]")
    a.e("global_load_ushort v4, v1, s[10:11]")
    a.e("global_load_ushort v5, v1, s[12:13]")
    a.e("global_load_ushort v6, v1, s[14:15]")
    a.e("global_load_ushort v7, v1, s[16:17]")
    a.e("global_load_ushort v8, v1, s[18:19]")
    a.e("global_load_ushort v9, v1, s[20:21]")
    srd(a, 28, 24, WS_SIZE)
    TB = 53*544 + 16
    LANE, WV = 11, 12
    a.e("v_and_b32 v%d, 63, v0", LANE)
    a.e("v_lshrrev_b32 v%d, 6, v0", WV)
    GA = 64
    a.e("v_lshlrev_b32 v13, 3, v%d", LANE)
    a.e("v_sub_u32 v13, v%d, v13", WV)
    a.e("v_add_u32 v13, 2046, v13")
    a.e("v_mov_b32 v20, 128")
    a.e("s_movk_i32 s5, 0x4280")
    for p in range(4):
        for j in range(0, 8, 2):
            o = 512*p + j
            a.e("v_subrev_u32 v14, %d, v13", o)
            a.e("v_subrev_u32 v15, %d, v13", o+1)
            a.e("v_cvt_f32_i32 v16, v14")
            a.e("v_cvt_f32_i32 v17, v15")
            a.e("v_cvt_pk_bf16_f32 v16, v16, v17")
            a.e("v_bfe_i32 v17, v16, 0, 16")
            a.e("v_ashrrev_i32 v16, 16, v16")
            a.e("v_subrev_u32 v17, s5, v17")
            a.e("v_subrev_u32 v16, s5, v16")
            if p == 3:
                a.e("v_med3_i32 v17, v17, v14, v20")
                a.e("v_med3_i32 v16, v16, v15, v20")
                a.e("v_add_u32 v17, %d, v17", TB//2)
                a.e("v_add_u32 v16, %d, v16", TB//2)
            a.e("v_lshlrev_b32 v%d, 1, v17", GA + 8*p + j)
            a.e("v_lshlrev_b32 v%d, 1, v16", GA + 8*p + j + 1)
    WA, PA, QA0, QA1, C01, C23, C1, SA = 21, 22, 23, 24, 25, 26, 27, 28
    a.e("v_lshlrev_b32 v%d, 2, v0", WA)
    a.e("v_and_b32 v14, 15, v0")
    a.e("v_bfe_u32 v15, v0, 4, 2")
    a.e("v_lshlrev_b32 v16, 4, v15")
    a.e("v_lshl_add_u32 v17, v%d, 4, v14", WV)
    a.e("s_movk_i32 s6, 544")
    a.e("v_mad_u32_u24 v%d, v17, s6, v16", PA)
    a.e("v_mad_u32_u24 v%d, v14, s6, v16", QA0)
    a.e("v_min_u32 v18, 4, v14")
    a.e("v_mad_u32_u24 v%d, v18, s6, v16", QA1)
    a.e("v_lshlrev_b32 v18, 4, v17")
    a.e("v_lshl_add_u32 v%d, v15, 3, v18", C01)
    a.e("v_lshlrev_b32 v18, 3, v17")
    a.e("v_add_u32 v18, 512, v18")
    a.e("v_cmp_eq_u32 vcc, 2, v15")
    a.e("v_cndmask_b32 v%d, v%d, v18, vcc", C01, C01)
    a.e("v_lshlrev_b32 v18, 2, v17")
    a.e("v_add_u32 v18, 768, v18")
    a.e("v_cmp_eq_u32 vcc, 3, v15")
    a.e("v_cndmask_b32 v%d, v%d, v18, vcc", C01, C01)
    a.e("v_cndmask_b32 v18, 4, v20, vcc")
    a.e("v_add_u32 v%d, v%d, v18", C23, C01)
    a.e("v_lshlrev_b32 v18, 8, v15")
    a.e("v_lshl_add_u32 v%d, v17, 1, v18", C1)
    a.e("v_lshlrev_b32 v18, 12, v%d", WV)
    a.e("v_lshl_add_u32 v%d, v%d, 4, v18", SA, LANE)
    a.e("s_lshl_b32 s7, s2, 13")
    a.e("s_add_u32 s7, s7, 0x%x", WS_KT)
    a.e("v_mov_b32 v18, 0")
    a.e("v_mov_b32 v19, %d", TB-4)
    a.e("ds_write_b32 v19, v18")
    a.e("v_mov_b32 v18, 0x3f80")
    a.e("ds_write_b32 v%d, v18 offset:%d", WA, 32*544)
    a.e("s_waitcnt vmcnt(4)")
    a.e("v_lshlrev_b32 v10, 16, v10")
    a.e("v_mul_f32 v10, %s, v10", f32(math.log2(math.e)))
    a.e("v_exp_f32 v10, v10")
    a.e("v_lshlrev_b32 v4, 16, v4")
    a.e("v_lshlrev_b32 v5, 16, v5")
    a.e("v_cvt_pk_bf16_f32 v10, v10, v10")
    a.e("v_lshlrev_b32 v10, 16, v10")
    a.e("v_mul_f32 v4, v10, v4")
    a.e("v_mul_f32 v5, v10, v5")
    a.e("v_mul_f32 v4, %s, v4", f32(math.log2(math.e)))
    a.e("v_mul_f32 v5, 0.15915494, v5")
    E1, E8, E128 = 30, 32, 34
    for (E, l, t) in ((E8, 8.0, 14), (E128, 128.0, 16), (E1, 1.0, 18)):
        a.e("v_mul_f32 v%d, %s, v4", t, f32(l))
        a.e("v_mul_f32 v%d, %s, v5", t+1, f32(l))
        a.e("v_fract_f32 v%d, v%d", t+1, t+1)
        a.e("v_exp_f32 v%d, v%d", t, t)
        a.e("v_cos_f32 v%d, v%d", E, t+1)
        a.e("v_sin_f32 v%d, v%d", E+1, t+1)
    a.e("s_waitcnt vmcnt(0)")
    for r in (6, 7, 8, 9): a.e("v_lshlrev_b32 v%d, 16, v%d", r, r)
    for (E, t) in ((E8, 14), (E128, 16), (E1, 18)):
        a.e("v_pk_mul_f32 %s, %s, %s op_sel_hi:[1,0]", vr(E,2), vr(E,2), vr(t,2))
    a.e("v_pk_mul_f32 v[6:7], v[6:7], v[10:11] op_sel_hi:[1,0]")
    PAa, PAb, PBa, PBb = 36, 38, 40, 42
    cmul(a, PAa, 8, 6)
    cmul(a, PBa, PAa, E128)
    E2, E3, E4, E6, E256, E512, E768, E1024, T0, T1 = 44, 46, 48, 50, 52, 54, 56, 58, 60, 62
    Q = [(1, E1, None, None), (2, E2, E1, E1), (8, E256, E128, E128), (3, E3, E2, E1), (4, E4, E2, E2), (12, E512, E256, E256),
         (5, T0, E4, E1), (6, E6, E4, E2), (7, T1, E4, E3), (9, T0, E256, E2), (10, T1, E256, E4), (11, T0, E256, E6),
         (13, T1, E512, E4), (14, E768, E512, E256), (16, E1024, E512, E512), (15, T0, E768, E4), (17, T1, E1024, E256),
         (18, T0, E1024, E512), (19, T1, E1024, E768), (20, T0, E1024, E1024)]
    pa, pb, pan, pbn = PAa, PBa, PAb, PBb
    CV = [14, 15, 16, 17, 18, 19]; ci = [0]
    def cv():
        ci[0] = (ci[0] + 1) % len(CV); return CV[ci[0]]
    qi = 0
    for i in range(16):
        qs = Q[qi:qi+(2 if i < 4 else 1)]; qi += len(qs)
        if i < 15:
            a.e("v_pk_mul_f32 %s, %s, %s op_sel_hi:[1,0]", vr(pan,2), vr(pa,2), vr(E8,2))
            a.e("v_pk_mul_f32 %s, %s, %s op_sel_hi:[1,0]", vr(pbn,2), vr(pb,2), vr(E8,2))
        c1 = cv(); c2 = cv()
        a.e("v_cvt_pk_bf16_f32 v%d, v%d, v%d", c1, pa, pa+1)
        a.e("v_cvt_pk_bf16_f32 v%d, v%d, v%d", c2, pb, pb+1)
        if i < 15:
            for (n, o) in ((pan, pa), (pbn, pb)):
                a.e("v_pk_fma_f32 %s, %s, %s, %s op_sel:[1,1,0] op_sel_hi:[0,1,1] neg_lo:[1,0,0]", vr(n,2), vr(o,2), vr(E8,2), vr(n,2))
        a.e("ds_write_b32 v%d, v%d offset:%d", WA, c1, i*544)
        a.e("ds_write_b32 v%d, v%d offset:%d", WA, c2, (16+i)*544)
        for (row, d, x, y) in qs:
            if x is not None: cmul(a, d, x, y)
            c = cv()
            a.e("v_cvt_pk_bf16_f32 v%d, v%d, -v%d", c, d, d+1)
            a.e("ds_write_b32 v%d, v%d offset:%d", WA, c, (32+row)*544)
        pa, pan = pan, pa; pb, pbn = pbn, pb
    assert qi == len(Q)
    a.e("s_waitcnt lgkmcnt(0)")
    a.e("s_barrier")
    FR = [96, 108, 32, 44]
    def rd(ks):
        b = FR[ks % 4]
        a.e("ds_read_b128 %s, v%d offset:%d", vr(b,4), PA, ks*64)
        a.e("ds_read_b128 %s, v%d offset:%d", vr(b+4,4), QA0, 32*544 + ks*64)
        a.e("ds_read_b128 %s, v%d offset:%d", vr(b+8,4), QA1, 48*544 + ks*64)
    for ks in range(4): rd(ks)
    D0, D1 = 4, 56
    for ks in range(8):
        b = FR[ks % 4]
        a.e("s_waitcnt lgkmcnt(%d)", 3*min(3, 7-ks))
        a.e("v_mfma_f32_16x16x32_bf16 %s, %s, %s, %s", vr(D0,4), vr(b+4,4), vr(b,4), "0" if ks == 0 else vr(D0,4))
        a.e("v_mfma_f32_16x16x32_bf16 %s, %s, %s, %s", vr(D1,4), vr(b+8,4), vr(b,4), "0" if ks == 0 else vr(D1,4))
        if ks + 4 < 8: rd(ks+4)
    a.e("v_cvt_pk_bf16_f32 v14, v%d, v%d", D0, D0+1)
    a.e("v_cvt_pk_bf16_f32 v15, v%d, v%d", D0+2, D0+3)
    a.e("v_cvt_pk_bf16_f32 v16, v%d, v%d", D1, D1+1)
    a.e("v_cvt_pk_bf16_f32 v17, v%d, v%d", D1+2, D1+3)
    a.e("ds_write_b32 v%d, v14 offset:%d", C01, TB)
    a.e("ds_write_b32 v%d, v15 offset:%d", C23, TB)
    a.e("ds_write_b16 v%d, v16 offset:%d", C1, TB+1024)
    a.e("ds_write_b16_d16_hi v%d, v16 offset:%d", C1, TB+1024+64)
    a.e("ds_write_b16 v%d, v17 offset:%d", C1, TB+1024+128)
    a.e("ds_write_b16_d16_hi v%d, v17 offset:%d", C1, TB+1024+192)
    a.e("s_waitcnt lgkmcnt(0)")
    a.e("s_barrier")
    for e in range(32):
        a.e("ds_read_u16 v%d, v%d offset:%d", GA+e, GA+e, TB if e < 24 else 0)
        if e % 8 == 7 and e > 7:
            p = e//8 - 1
            a.e("s_waitcnt lgkmcnt(8)")
            for j in range(4): a.e("v_lshl_or_b32 v%d, v%d, 16, v%d", 32+4*p+j, GA+8*p+2*j+1, GA+8*p+2*j)
            a.e("buffer_store_dwordx4 %s, v%d, s[28:31], s7 offen offset:%d sc1", vr(32+4*p,4), SA, 1024*p)
    a.e("s_waitcnt lgkmcnt(0)")
    for j in range(4): a.e("v_lshl_or_b32 v%d, v%d, 16, v%d", 44+j, GA+24+2*j+1, GA+24+2*j)
    a.e("buffer_store_dwordx4 v[44:47], v%d, s[28:31], s7 offen offset:3072 sc1", SA)
    a.e("s_endpgm")
    a.label(name + "_ln")
    a.e("s_sub_u32 s2, s2, %d", NKG)
    a.e("s_cmp_ge_u32 s2, %d", NLN)
    a.e("s_cbranch_scc1 %s_end", name)
    a.e("v_lshrrev_b32 v1, 4, v0")
    a.e("v_and_b32 v2, 15, v0")
    a.e("v_lshlrev_b32 v2, 3, v2")
    a.e("s_movk_i32 s4, 1152")
    a.e("v_mad_u32_u24 v3, v1, s4, v2")
    a.e("s_mul_i32 s5, s2, 9216")
    a.e("v_add_u32 v3, s5, v3")
    a.e("s_waitcnt lgkmcnt(0)")
    X = 10
    for i in range(9):
        a.e("global_load_dwordx2 %s, v3, s[8:9] offset:%d", vr(X+2*i,2), 128*i)
    srd(a, 28, 24, WS_SIZE)
    a.e("v_lshlrev_b32 v7, 2, v0")
    a.e("v_mov_b32 v8, 0")
    a.e("s_lshl_b32 s4, s2, 9")
    a.e("s_add_u32 s4, s4, 0x%x", WS_FLAG)
    a.e("buffer_store_dword v8, v7, s[28:31], s4 offen sc1")
    a.e("s_movk_i32 s4, 1216")
    a.e("v_mad_u32_u24 v4, v1, s4, v2")
    a.e("v_bfe_u32 v7, v0, 2, 2")
    a.e("v_and_b32 v8, 1, v0")
    a.e("v_mul_u32_u24 v8, 9760, v8")
    a.e("v_mad_u32_u24 v5, v7, s4, v8")
    a.e("v_bfe_u32 v7, v0, 4, 2")
    a.e("v_bfe_u32 v8, v0, 1, 1")
    a.e("v_lshl_add_u32 v7, v7, 1, v8")
    a.e("v_lshl_add_u32 v5, v7, 3, v5")
    a.e("v_lshrrev_b32 v7, 6, v0")
    a.e("v_mul_u32_u24 v8, 576, v7")
    a.e("v_add_u32 v5, v5, v8")
    a.e("s_lshr_b32 s5, s2, 1")
    a.e("v_add_u32 v8, s5, v0")
    a.e("v_and_b32 v8, 7, v8")
    a.e("v_lshlrev_b32 v8, 4, v8")
    a.e("v_bfe_u32 v9, v0, 3, 3")
    a.e("v_mad_u32_u24 v9, v7, 64, v9")
    a.e("v_lshl_add_u32 v9, v7, 3, v9")
    a.e("v_lshl_add_u32 v6, v9, 15, v8")
    a.e("s_lshl_b32 s6, s2, 7")
    a.e("s_add_u32 s6, s6, 0x%x", WS_UX)
    F = 32
    a.e("s_mov_b32 s7, 0xffff0000")
    for i in range(9):
        a.e("s_waitcnt vmcnt(%d)", 9-i)
        for h in range(2):
            a.e("v_lshlrev_b32 v%d, 16, v%d", F+4*i+2*h, X+2*i+h)
            a.e("v_and_b32 v%d, s7, v%d", F+4*i+2*h+1, X+2*i+h)
        a.e("ds_write_b64 v4, %s offset:%d", vr(X+2*i,2), 9760 + 128*i)
        if i == 0:
            a.e("v_pk_add_f32 v[28:29], %s, %s", vr(F,2), vr(F+2,2))
        else:
            a.e("v_pk_add_f32 v[30:31], %s, %s", vr(F+4*i,2), vr(F+4*i+2,2))
            a.e("v_pk_add_f32 v[28:29], v[28:29], v[30:31]")
    def red16(r):
        for sh in (8, 4, 2, 1):
            a.e("v_add_f32_dpp v%d, v%d, v%d row_ror:%d row_mask:0xf bank_mask:0xf", r, r, r, sh)
    a.e("v_add_f32 v28, v28, v29")
    red16(28)
    a.e("v_mul_f32 v28, %s, v28", f32(1.0/576))
    a.e("v_cvt_pk_bf16_f32 v70, v28, v28")
    a.e("v_lshlrev_b32 v70, 16, v70")
    for i in range(18):
        t = 72 + 2*(i % 2)
        a.e("v_pk_add_f32 %s, %s, v[28:29] op_sel_hi:[1,0] neg_lo:[0,1] neg_hi:[0,1]", vr(t,2), vr(F+2*i,2))
        s = 76 + 2*(i % 2)
        if i < 2: a.e("v_pk_mul_f32 %s, %s, %s", vr(s,2), vr(t,2), vr(t,2))
        else: a.e("v_pk_fma_f32 %s, %s, %s, %s", vr(s,2), vr(t,2), vr(t,2), vr(s,2))
        a.e("v_pk_add_f32 %s, %s, v[70:71] op_sel_hi:[1,0] neg_lo:[0,1] neg_hi:[0,1]", vr(F+2*i,2), vr(F+2*i,2))
    a.e("v_pk_add_f32 v[76:77], v[76:77], v[78:79]")
    a.e("v_add_f32 v76, v76, v77")
    def rnd(i):
        a.e("v_cvt_pk_bf16_f32 v%d, v%d, v%d", F+2*i+1, F+2*i, F+2*i+1)
        a.e("v_lshlrev_b32 v%d, 16, v%d", F+2*i, F+2*i+1)
        a.e("v_and_b32 v%d, s7, v%d", F+2*i+1, F+2*i+1)
    chain = ["v_add_f32_dpp v76, v76, v76 row_ror:%d row_mask:0xf bank_mask:0xf" % sh for sh in (8,4,2,1)]
    chain += ["v_mul_f32 v76, %s, v76" % f32(1.0/576), "v_cvt_pk_bf16_f32 v76, v76, v76", "v_lshlrev_b32 v76, 16, v76",
              "v_add_f32 v76, %s, v76" % f32(1e-5), "v_cvt_pk_bf16_f32 v76, v76, v76", "v_lshlrev_b32 v76, 16, v76",
              "v_sqrt_f32 v76, v76", "v_cvt_pk_bf16_f32 v76, v76, v76", "v_lshlrev_b32 v76, 16, v76", "v_rcp_f32 v76, v76"]
    for i in range(18):
        rnd(i)
        if i < len(chain): a.e(chain[i])
    for i in range(9):
        for h in range(2):
            a.e("v_pk_mul_f32 %s, %s, v[76:77] op_sel_hi:[1,0]", vr(F+4*i+2*h,2), vr(F+4*i+2*h,2))
        a.e("v_cvt_pk_bf16_f32 v%d, v%d, v%d", F+4*i, F+4*i, F+4*i+1)
        a.e("v_cvt_pk_bf16_f32 v%d, v%d, v%d", F+4*i+1, F+4*i+2, F+4*i+3)
        a.e("ds_write_b64 v4, %s offset:%d", vr(F+4*i,2), 128*i)
    a.e("s_waitcnt lgkmcnt(0)")
    a.e("s_barrier")
    for k in range(9):
        a.e("ds_read_b64_tr_b16 %s, v5 offset:%d", vr(F+4*k,2), 64*k)
        a.e("ds_read_b64_tr_b16 %s, v5 offset:%d", vr(F+4*k+2,2), 64*k + 4*1216)
        if k >= 4:
            a.e("s_waitcnt lgkmcnt(8)")
            a.e("buffer_store_dwordx4 %s, v6, s[28:31], s6 offen sc1", vr(F+4*(k-4),4))
            a.e("s_add_u32 s6, s6, 0x40000")
    for k in range(5, 9):
        a.e("s_waitcnt lgkmcnt(%d)", 2*(8-k))
        a.e("buffer_store_dwordx4 %s, v6, s[28:31], s6 offen sc1", vr(F+4*k,4))
        a.e("s_add_u32 s6, s6, 0x40000")
    a.label(name + "_end")
    a.e("s_endpgm")
    return finish(a, name, 128, 48), (name, (NKG+NLN,1,1), (128,1,1), K1_LDS)
```

```python
from common import *
NCONV = 144; NPK1 = 72; NPK2 = 36
U0 = 3840
KB0 = U0 + 32768
K2_LDS = KB0 + 8*4160
def gen_conv(a, name):
    LANE, G, M = 1, 2, 3
    a.e("v_lshlrev_b32 v4, 4, v%d", LANE)
    a.e("s_lshl_b32 s4, s2, 2")
    a.e("s_add_u32 s4, s4, s33")
    a.e("s_lshl_b32 s5, s4, 13")
    a.e("s_add_u32 s5, s5, 0x%x", WS_KT)
    a.e("s_mul_i32 s6, s33, 8320")
    a.e("s_add_u32 s6, s6, %d", KB0)
    a.e("s_lshl_b32 s7, s2, 15")
    a.e("s_lshl_b32 s34, s33, 13")
    a.e("s_add_u32 s7, s7, s34")
    a.e("s_add_u32 s7, s7, 0x%x", WS_UX)
    a.e("s_add_u32 s34, s34, %d", U0)
    a.e("s_lshl_b32 s35, s4, 1")
    a.e("v_mov_b32 v5, s35")
    a.e("s_waitcnt lgkmcnt(0)")
    srd(a, 28, 24, WS_SIZE)
    for h in range(2):
        a.e("s_add_u32 m0, s34, %d", 4096*h)
        for k in range(4): a.e("buffer_load_dwordx4 v4, s[28:31], s7 offen offset:%d lds", 1024*k)
        a.e("s_add_u32 m0, s6, %d", 4160*h)
        a.e("s_add_u32 s7, s7, 4096")
        for k in range(4): a.e("buffer_load_dwordx4 v4, s[28:31], s5 offen offset:%d lds", 1024*k)
        a.e("s_add_u32 s5, s5, 4096")
    a.e("global_load_ushort v6, v5, s[8:9]")
    for r in range(8, 12): a.e("v_mov_b32 v%d, 0", r)
    a.e("v_min_u32 v7, 239, v0")
    a.e("v_lshlrev_b32 v7, 4, v7")
    a.e("ds_write_b128 v7, v[8:11]")
    a.e("v_bfe_u32 v7, v0, 2, 1")
    a.e("v_mul_u32_u24 v7, 4160, v7")
    a.e("v_and_b32 v12, 3, v0")
    a.e("v_lshl_add_u32 v7, v12, 4, v7")
    a.e("v_add_u32 v7, s6, v7")
    a.e("ds_write_b128 v7, v[8:11] offset:4096")
    KA = 12
    a.e("v_and_b32 v7, 1, v%d", M)
    a.e("v_mul_u32_u24 v8, 4162, v7")
    a.e("v_lshlrev_b32 v9, 1, v%d", M)
    a.e("v_sub_u32 v8, v8, v9")
    a.e("v_lshl_add_u32 v8, v%d, 4, v8", G)
    a.e("v_add_u32 v8, s6, v8")
    for ip in range(4): a.e("v_add_u32 v%d, %d, v8", KA+ip, 4060 - 960 - 1024*ip)
    UA = 16
    a.e("v_lshl_add_u32 v7, v%d, 1, v%d", M, G)
    a.e("v_lshlrev_b32 v7, 7, v7")
    a.e("v_lshrrev_b32 v8, 1, v%d", G)
    a.e("v_add3_u32 v8, v8, v%d, s33", M)
    for r in range(4):
        a.e("v_add_u32 v9, %d, v8", (8 - 1 - 2*r) % 8)
        a.e("v_and_b32 v9, 7, v9")
        a.e("v_lshl_add_u32 v9, v9, 4, v7")
        a.e("v_add_u32 v%d, %d, v9", UA+r, U0 - 256 - 512*r - 2048)
    ZU, ZX, ST = 20, 21, 22
    a.e("v_lshrrev_b32 v8, 1, v%d", G)
    a.e("v_lshl_add_u32 v7, v%d, 1, v8", M)
    a.e("v_lshlrev_b32 v%d, 4, v7", ST)
    a.e("v_lshlrev_b32 v7, 7, v7")
    a.e("v_and_b32 v9, 1, v%d", G)
    a.e("v_lshl_add_u32 v7, v9, 3, v7")
    a.e("v_lshl_add_u32 v%d, v9, 9, v%d", ST, ST)
    a.e("v_add_u32 v8, s33, v%d", M)
    a.e("v_and_b32 v8, 7, v8")
    a.e("v_lshl_add_u32 v%d, v8, 4, v7", ZU)
    a.e("v_xor_b32 v%d, 64, v%d", ZX, ZU)
    a.e("s_lshl_b32 s7, s4, 12")
    a.e("s_add_u32 s7, s7, 0x%x", WS_HT)
    a.e("s_mov_b32 s36, 0xffff0000")
    ACC, Z, ZT = 32, 64, 24
    KF = [96, 160]; UF = [128, 192]
    def reads(rho):
        b = rho & 1; out = []
        for i in range(8):
            out.append("ds_read_b128 %s, v%d offset:%d" % (vr(UF[b]+4*i,4), UA + rho % 4, 4096*i + (2048 if rho < 4 else 0)))
            o = (512*(1 - (i & 1)) + 64*(7 - rho))//4
            out.append("ds_read2_b32 %s, v%d offset0:%d offset1:%d" % (vr(KF[b]+4*i,2), KA + i//2, o, o+1))
            out.append("ds_read2_b32 %s, v%d offset0:%d offset1:%d" % (vr(KF[b]+4*i+2,2), KA + i//2, o+2, o+3))
        return out
    a.e("s_waitcnt vmcnt(0) lgkmcnt(0)")
    a.e("s_barrier")
    a.e("v_lshlrev_b32 v6, 16, v6")
    for r in reads(0): a.e(r)
    for rho in range(8):
        b = rho & 1
        fill = ["ds_read_b64 %s, v%d offset:%d" % (vr(ZT,2), ZU, U0 + 4096*rho), "ds_read_b64 %s, v%d offset:%d" % (vr(ZT+2,2), ZX, U0 + 4096*rho)]
        if rho < 7: fill += reads(rho+1)
        z = Z + 4*rho
        val = ["s_waitcnt lgkmcnt(%d)" % (15 if rho < 7 else 0)]
        for h in range(2):
            val += ["v_lshlrev_b32 v%d, 16, v%d" % (ZT+4, ZT+h), "v_and_b32 v%d, s36, v%d" % (ZT+5, ZT+h),
                    "v_lshlrev_b32 v%d, 16, v%d" % (z+2*h, ZT+2+h), "v_and_b32 v%d, s36, v%d" % (z+2*h+1, ZT+2+h),
                    "v_fmac_f32 v%d, v6, v%d" % (z+2*h, ZT+4), "v_fmac_f32 v%d, v6, v%d" % (z+2*h+1, ZT+5)]
        a.e("s_waitcnt lgkmcnt(0)")
        n = 0
        for i in range(8):
            for dl in range(8 - i):
                mt = i + dl
                c = "0" if (rho == 0 and i == 0) else vr(ACC+4*mt,4)
                a.e("v_mfma_f32_16x16x32_bf16 %s, %s, %s, %s", vr(ACC+4*mt,4), vr(KF[b]+4*i,4), vr(UF[b]+4*dl,4), c)
                if fill: a.e(fill.pop(0))
                elif n >= 8:
                    for _ in range(2):
                        if val: a.e(val.pop(0))
                n += 1
        assert not fill and not val
    for pr in range(4):
        for mt in (2*pr, 2*pr+1):
            for h in range(2):
                a.e("v_pk_add_f32 %s, %s, %s", vr(Z+4*mt+2*h,2), vr(Z+4*mt+2*h,2), vr(ACC+4*mt+2*h,2))
        o = 96 + 4*pr
        for q in range(4): a.e("v_cvt_pk_bf16_f32 v%d, v%d, v%d", o+q, Z+8*pr+2*q, Z+8*pr+2*q+1)
        a.e("v_permlane16_swap_b32 v%d, v%d", o, o+2)
        a.e("v_permlane16_swap_b32 v%d, v%d", o+1, o+3)
        a.e("buffer_store_dwordx4 %s, v%d, s[28:31], s7 offen offset:%d sc1", vr(o,4), ST, 1024*pr)
    a.e("s_endpgm")

def gen_pack(a, name):
    LANE, G, M = 1, 2, 3
    a.e("v_lshrrev_b32 v5, 3, v%d", LANE)
    a.e("v_and_b32 v6, 6, v5")
    a.e("v_xor_b32 v6, v6, v%d", LANE)
    a.e("v_and_b32 v6, 7, v6")
    a.e("v_lshlrev_b32 v6, 4, v6")
    a.e("s_waitcnt lgkmcnt(0)")
    srd(a, 28, 24, WS_SIZE)
    a.e("s_cmp_ge_u32 s2, %d", NPK1)
    a.e("s_cbranch_scc1 %s_pd", name)
    a.e("s_and_b32 s4, s2, 1")
    a.e("s_cmp_eq_u32 s4, 0")
    a.e("s_cselect_b32 s40, s12, s14")
    a.e("s_cselect_b32 s41, s13, s15")
    a.e("s_and_b32 s5, s2, 0xfe")
    a.e("s_and_b32 s6, s33, 1")
    a.e("s_add_u32 s5, s5, s6")
    a.e("s_lshr_b32 s6, s33, 1")
    a.e("s_movk_i32 s47, 9216")
    a.e("s_mul_i32 s44, s6, %d", 288*9216)
    a.e("s_lshl_b32 s7, s5, 7")
    a.e("s_add_u32 s44, s44, s7")
    a.e("s_add_u32 s45, s44, %d", 16*9216)
    a.e("s_mov_b32 s46, %d", 32*9216)
    a.e("s_mul_i32 s48, s5, %d", 4*36864)
    a.e("s_mul_i32 s7, s6, %d", 9*2048)
    a.e("s_add_u32 s48, s48, s7")
    a.e("s_lshl_b32 s7, s4, 10")
    a.e("s_add_u32 s48, s48, s7")
    a.e("s_add_u32 s48, s48, 0x%x", WS_WP1)
    a.e("s_mul_i32 s52, s6, 36864")
    a.e("s_lshl_b32 s7, s5, 9")
    a.e("s_add_u32 s52, s52, s7")
    a.e("s_lshl_b32 s7, s4, 6")
    a.e("s_add_u32 s52, s52, s7")
    a.e("s_add_u32 s52, s52, 0x%x", WS_CS)
    a.e("s_mov_b32 s53, 1")
    a.e("s_branch %s_pgo", name)
    a.label(name + "_pd")
    a.e("s_mov_b32 s40, s16")
    a.e("s_mov_b32 s41, s17")
    a.e("s_sub_u32 s4, s2, %d", NPK1)
    a.e("s_lshl_b32 s4, s4, 2")
    a.e("s_add_u32 s4, s4, s33")
    a.e("s_mul_i32 s5, s4, 1821")
    a.e("s_lshr_b32 s5, s5, 16")
    a.e("s_mul_i32 s6, s5, 36")
    a.e("s_sub_u32 s6, s4, s6")
    a.e("s_movk_i32 s47, 1152")
    a.e("s_sub_u32 s7, s6, 4")
    a.e("s_and_b32 s34, s7, 7")
    a.e("s_lshr_b32 s35, s7, 3")
    a.e("s_lshl_b32 s35, s35, 5")
    a.e("s_lshl_b32 s36, s6, 1")
    a.e("s_cmp_lt_u32 s6, 4")
    a.e("s_cselect_b32 s34, s36, s34")
    a.e("s_cselect_b32 s35, 128, s35")
    a.e("s_cselect_b32 s36, %d, %d", 9, 1)
    a.e("s_mul_i32 s36, s36, %d", 16*1152)
    a.e("s_lshl_b32 s5, s5, 3")
    a.e("s_add_u32 s34, s34, s5")
    a.e("s_mul_i32 s34, s34, 144")
    a.e("s_add_u32 s34, s34, s35")
    a.e("s_mul_i32 s44, s34, 1152")
    a.e("s_add_u32 s45, s44, s36")
    a.e("s_movk_i32 s46, 128")
    a.e("s_mul_i32 s48, s4, 9216")
    a.e("s_add_u32 s48, s48, 0x%x", WS_WP2)
    a.e("s_mov_b32 s52, 0")
    a.e("s_mov_b32 s53, 0")
    a.label(name + "_pgo")
    a.e("s_and_b32 s41, s41, 0xffff")
    a.e("s_mov_b32 s42, %d", 576*4608*2)
    a.e("s_mov_b32 s43, 0x20000")
    a.e("v_mad_u32_u24 v4, v5, s47, v6")
    a.e("s_lshl_b32 s49, s47, 3")
    a.e("v_add_u32 v7, s49, v4")
    a.e("s_lshl_b32 s50, s33, 14")
    def dma(t):
        a.e("s_add_u32 m0, s50, %d", (t % 4)*4096)
        a.e("buffer_load_dwordx4 v4, s[40:43], s44 offen lds")
        a.e("s_add_u32 m0, s50, %d", (t % 4)*4096 + 1024)
        a.e("buffer_load_dwordx4 v7, s[40:43], s44 offen lds")
        a.e("s_add_u32 m0, s50, %d", (t % 4)*4096 + 2048)
        a.e("buffer_load_dwordx4 v4, s[40:43], s45 offen lds")
        a.e("s_add_u32 m0, s50, %d", (t % 4)*4096 + 3072)
        a.e("buffer_load_dwordx4 v7, s[40:43], s45 offen lds")
        a.e("s_add_u32 s44, s44, s46")
        a.e("s_add_u32 s45, s45, s46")
    for t in range(4): dma(t)
    TA = 8
    a.e("v_lshrrev_b32 v12, 2, v%d", LANE)
    a.e("v_and_b32 v13, 6, v12")
    a.e("v_lshlrev_b32 v13, 4, v13")
    a.e("v_and_b32 v14, 3, v%d", LANE)
    a.e("v_lshlrev_b32 v14, 3, v14")
    a.e("v_lshl_add_u32 v14, v12, 7, v14")
    a.e("v_add_u32 v14, s50, v14")
    for tau in range(4):
        a.e("v_xor_b32 v15, %d, v13", 32*tau)
        a.e("v_add_u32 v%d, v14, v15", TA+tau)
    a.e("v_lshlrev_b32 v16, 4, v%d", LANE)
    for tau in range(4): a.e("v_mov_b32 v%d, 0", 20+tau)
    a.e("s_mov_b32 s51, 0x3f803f80")
    FB = [32, 48]
    q = []
    for t in range(4): q += [("d", t)]*4
    for t in range(9):
        last = max(i for i, x in enumerate(q) if x == ("d", t))
        a.e("s_waitcnt vmcnt(%d)", len(q) - 1 - last)
        b = FB[t & 1]
        for tau in range(4):
            a.e("ds_read_b64_tr_b16 %s, v%d offset:%d", vr(b+4*tau,2), TA+tau, (t % 4)*4096)
            a.e("ds_read_b64_tr_b16 %s, v%d offset:%d", vr(b+4*tau+2,2), TA+tau, (t % 4)*4096 + 2048)
        a.e("s_waitcnt lgkmcnt(0)")
        if t + 4 < 9:
            dma(t+4); q += [("d", t+4)]*4
        for tau in range(4):
            dl = 4*t + tau
            a.e("s_cmp_eq_u32 s53, 1")
            a.e("s_mov_b32 s4, %d", tau*36864 + t*2048)
            a.e("s_cselect_b32 s4, s4, %d", (dl//9)*144*9216 + (dl % 9)*1024)
            a.e("s_add_u32 s4, s4, s48")
            a.e("buffer_store_dwordx4 %s, v16, s[28:31], s4 offen sc1", vr(b+4*tau,4))
            q.append(("s", t))
            for r in range(4): a.e("v_dot2c_f32_bf16 v%d, s51, v%d", 20+tau, b+4*tau+r)
    a.e("s_cmp_eq_u32 s53, 0")
    a.e("s_cbranch_scc1 %s_end", name)
    for tau in range(4): a.e("v_mov_b32 v%d, v%d", 24+tau, 20+tau)
    for tau in range(4): a.e("v_permlane32_swap_b32 v%d, v%d", 20+tau, 24+tau)
    for tau in range(4): a.e("v_add_f32 v%d, v%d, v%d", 20+tau, 20+tau, 24+tau)
    for tau in range(4): a.e("v_mov_b32 v%d, v%d", 24+tau, 20+tau)
    for tau in range(4): a.e("v_permlane16_swap_b32 v%d, v%d", 20+tau, 24+tau)
    for tau in range(4): a.e("v_add_f32 v%d, v%d, v%d", 20+tau, 20+tau, 24+tau)
    for tau in range(1, 4):
        a.e("v_cmp_eq_u32 vcc, %d, v%d", tau, G)
        a.e("v_cndmask_b32 v20, v20, v%d, vcc", 20+tau)
    a.e("v_lshlrev_b32 v5, 2, v%d", M)
    a.e("v_lshl_add_u32 v5, v%d, 7, v5", G)
    a.e("buffer_store_dword v20, v5, s[28:31], s52 offen sc1")

def gen_k2(name="conv_kernel"):
    a = Asm()
    kernel_header(a, name)
    a.e("s_load_dwordx8 s[8:15], s[0:1], 64")
    a.e("s_load_dwordx2 s[16:17], s[0:1], 96")
    a.e("s_load_dwordx2 s[24:25], s[0:1], 120")
    a.e("v_lshrrev_b32 v4, 6, v0")
    a.e("v_and_b32 v1, 63, v0")
    a.e("v_readfirstlane_b32 s33, v4")
    a.e("v_bfe_u32 v2, v0, 4, 2")
    a.e("v_and_b32 v3, 15, v0")
    a.e("s_cmp_ge_u32 s2, %d", NCONV)
    a.e("s_cbranch_scc1 %s_pack", name)
    gen_conv(a, name)
    a.label(name + "_pack")
    a.e("s_sub_u32 s2, s2, %d", NCONV)
    a.e("s_cmp_ge_u32 s2, %d", NPK1 + NPK2)
    a.e("s_cbranch_scc1 %s_end", name)
    gen_pack(a, name)
    a.label(name + "_end")
    a.e("s_endpgm")
    return finish(a, name, 224, 64), (name, (NCONV+NPK1+NPK2,1,1), (256,1,1), 98304)
```

```python
from common import *
SLOT = 36864
XS0 = 3*SLOT
CSL = XS0 + 49152
K3_LDS = CSL + 1280
def xreg(p, tau):
    return vr(16*p + 4*tau, 4, "a") if p < 16 else vr(224 + 16*(p-16) + 4*tau, 4)
def xhalf(p, tau, h):
    return vr(16*p + 4*tau + 2*h, 2, "a") if p < 16 else vr(224 + 16*(p-16) + 4*tau + 2*h, 2)

def gen_k3(name="gemm1_kernel", rot=True):
    a = Asm()
    kernel_header(a, name)
    vm = Q(a, "vmcnt", 63); lg = Q(a, "lgkmcnt", 15)
    E = lambda fmt, *x: (lambda: a.e(fmt, *x))
    def EM(fmt, *x):
        def f():
            a.e(fmt, *x); return 9
        return f
    a.e("s_load_dwordx2 s[24:25], s[0:1], 120")
    a.e("s_cmp_ge_u32 s2, 256")
    a.e("s_cbranch_scc1 %s_end", name)
    ACC = [96, 160]
    WB = [64, 80]
    HPK = 48; CSR = 32; MEAN = 24; R2 = 28
    XA = 4
    TA = 8
    WV = 12
    RA = [13, 14]
    CA = 15; L16 = 16; L8 = 17; BP = 18; T0 = 19
    ONES = 20
    a.e("v_lshrrev_b32 v4, 6, v0")
    a.e("v_and_b32 v1, 63, v0")
    a.e("v_readfirstlane_b32 s33, v4")
    a.e("s_and_b32 s3, s2, 7")
    a.e("s_lshr_b32 s4, s2, 3")
    a.e("s_and_b32 s5, s3, 1"); a.e("s_lshl_b32 s5, s5, 2"); a.e("s_and_b32 s6, s4, 3"); a.e("s_add_u32 s34, s5, s6")
    a.e("s_lshr_b32 s35, s3, 1")
    a.e("s_lshr_b32 s36, s4, 2")
    a.e("s_lshl_b32 s5, s35, 3"); a.e("s_add_u32 s37, s5, s36")
    if rot:
        a.e("s_lshl_b32 s5, s36, 1"); a.e("s_mul_i32 s6, s6, 5"); a.e("s_add_u32 s38, s5, s6")
        a.e("s_sub_u32 s5, s38, 18"); a.e("s_cmp_ge_u32 s38, 18"); a.e("s_cselect_b32 s38, s5, s38")
    else:
        a.e("s_mov_b32 s38, 0")
    KO = 40
    a.e("s_lshl_b32 s%d, s38, 11", KO)
    for p in range(1, 18):
        a.e("s_add_u32 s%d, s%d, 2048", KO+p, KO+p-1)
        a.e("s_cmp_eq_u32 s%d, %d", KO+p, SLOT)
        a.e("s_cselect_b32 s%d, 0, s%d", KO+p, KO+p)
    a.e("v_lshrrev_b32 v2, 3, v1")
    a.e("v_and_b32 v3, 6, v2")
    a.e("v_xor_b32 v3, v3, v1")
    a.e("v_and_b32 v3, 7, v3")
    a.e("v_lshlrev_b32 v3, 4, v3")
    a.e("v_lshl_add_u32 v3, v2, 12, v3")
    a.e("s_lshl_b32 s5, s34, 9"); a.e("s_lshl_b32 s6, s33, 7"); a.e("s_add_u32 s5, s5, s6"); a.e("s_add_u32 s5, s5, 0x%x", WS_HT)
    a.e("v_add_u32 v%d, s5, v3", XA)
    for j in range(1, 4): a.e("v_add_u32 v%d, %d, v%d", XA+j, 32768*j - 1024*j, XA)
    a.e("v_lshlrev_b32 v%d, 4, v1", L16)
    a.e("s_mul_i32 s5, s37, %d", 9*SLOT)
    a.e("s_lshr_b32 s39, s33, 1")
    a.e("s_mul_i32 s6, s39, %d", SLOT); a.e("s_add_u32 s5, s5, s6")
    a.e("s_and_b32 s6, s33, 1"); a.e("s_lshl_b32 s6, s6, 10"); a.e("s_add_u32 s5, s5, s6"); a.e("s_add_u32 s5, s5, 0x%x", WS_WP1)
    a.e("v_add_u32 v%d, s5, v%d", WV, L16)
    a.e("s_lshl_b32 s58, s33, 10")
    a.e("s_mul_i32 s59, s33, 12288"); a.e("s_add_u32 s59, s59, %d", XS0)
    a.e("s_waitcnt lgkmcnt(0)")
    srd(a, 28, 24, WS_SIZE)
    def xdma(p):
        out = [E("s_lshl_b32 s60, s%d, 6", KO+p), EM("s_add_u32 m0, s59, %d", (p % 3)*4096)]
        for j in range(4):
            def f(j=j):
                a.e("buffer_load_dwordx4 v%d, s[28:31], s60 offen offset:%d lds", XA+j, 1024*j); vm.push(("x", p))
            out.append(f)
        return out
    def wdma(st, n):
        out = []
        if st < 8: so = "s%d" % (KO + 9*(st & 1) + n)
        else:
            out.append(E("s_cmp_eq_u32 s39, 0"))
            out.append(E("s_cselect_b32 s61, s%d, s%d", KO+2*n, KO+2*n+1)); so = "s61"
        out.append(EM("s_add_u32 m0, s58, %d", (st % 3)*SLOT + 4096*n))
        def f():
            a.e("buffer_load_dwordx4 v%d, s[28:31], %s offen lds", WV, so); vm.push(("w", st, n))
        out.append(f)
        return out
    def run(l):
        for x in l: x()
    run(wdma(0, 0)); run(xdma(0)); run(wdma(0, 1)); run(xdma(1)); run(wdma(0, 2)); run(xdma(2)); run(wdma(0, 3))
    a.e("v_min_u32 v2, 143, v0")
    a.e("v_lshlrev_b32 v2, 3, v2")
    a.e("s_mul_i32 s5, s37, 1152"); a.e("s_add_u32 s5, s5, 0x%x", WS_CS); a.e("s_add_u32 s6, s5, 36864")
    a.e("buffer_load_dwordx2 v[32:33], v2, s[28:31], s5 offen"); vm.push("cs")
    a.e("buffer_load_dwordx2 v[34:35], v2, s[28:31], s6 offen"); vm.push("cs")
    a.e("v_lshrrev_b32 v19, 2, v1")
    a.e("v_and_b32 v20, 6, v19"); a.e("v_lshlrev_b32 v20, 4, v20")
    a.e("v_and_b32 v21, 3, v1"); a.e("v_lshlrev_b32 v21, 3, v21")
    a.e("v_lshl_add_u32 v21, v19, 7, v21")
    a.e("v_add_u32 v21, s59, v21")
    for tau in range(4):
        a.e("v_xor_b32 v22, %d, v20", 32*tau)
        a.e("v_add_u32 v%d, v21, v22", TA+tau)
    a.e("v_mov_b32 v%d, v%d", RA[0], L16)
    a.e("v_add_u32 v%d, %d, v%d", RA[1], 49152, L16)
    a.e("v_bfe_u32 v19, v0, 4, 2")
    a.e("v_lshlrev_b32 v%d, 4, v19", CA)
    a.e("v_add_u32 v%d, %d, v%d", CA, CSL, CA)
    a.e("v_lshlrev_b32 v%d, 3, v1", L8)
    a.e("v_and_b32 v19, 15, v0")
    a.e("v_and_b32 v20, 12, v19")
    a.e("v_lshl_add_u32 v19, v20, 2, v19")
    a.e("v_lshlrev_b32 v%d, 2, v19", BP)
    a.e("v_and_b32 v19, 3, v0")
    for r in range(1, 4): a.e("v_cmp_eq_u32 s[%d:%d], %d, v19", 62+2*r, 63+2*r, r)
    for r in range(4): a.e("v_mov_b32 v%d, 0x3f803f80", ONES+r)
    a.e("s_mul_i32 s5, s35, 36"); a.e("s_add_u32 s6, s5, s36"); a.e("s_add_u32 s6, s6, 4"); a.e("s_lshl_b32 s6, s6, 17")
    a.e("s_lshl_b32 s7, s34, 14"); a.e("s_lshl_b32 s8, s33, 12"); a.e("s_add_u32 s7, s7, s8"); a.e("s_add_u32 s7, s7, 0x%x", WS_HP)
    a.e("s_add_u32 s70, s6, s7")
    a.e("s_lshr_b32 s6, s36, 1"); a.e("s_add_u32 s6, s6, s5"); a.e("s_lshl_b32 s6, s6, 17"); a.e("s_add_u32 s71, s6, s7")
    a.e("s_and_b32 s6, s36, 1"); a.e("s_lshl_b32 s6, s6, 9"); a.e("s_add_u32 s71, s71, s6")
    a.e("s_mul_i32 s72, s39, %d", SLOT); a.e("s_sub_u32 s72, %d, s72", 2*SLOT)

    def wreads(st, n):
        g = 9*st + n; out = []
        for j in range(4):
            off = (st % 3)*SLOT + 4096*n + 1024*j
            r = 0
            if off >= 49152: r = 1; off -= 49152
            def f(j=j, r=r, off=off):
                a.e("ds_read_b128 %s, v%d offset:%d", vr(WB[g & 1] + 4*j, 4), RA[r], off); lg.push(("w", g))
            out.append(f)
        return out
    def xreads(p):
        out = []
        for tau in range(4):
            for h in range(2):
                def f(tau=tau, h=h):
                    a.e("ds_read_b64_tr_b16 %s, v%d offset:%d", xhalf(p, tau, h), TA+tau, (p % 3)*4096 + 2048*h); lg.push(("x", p))
                out.append(f)
        return out
    SUM = ACC[1] + 32; GRAM = ACC[1] + 48
    def mfmas(st, n):
        g = 9*st + n; out = []
        s = ACC[(st >> 1) & 1]
        for j in range(4):
            for tau in range(4):
                if st < 8:
                    p = 9*(st & 1) + n; d = s + 16*j + 4*tau; first = (p == 0)
                else:
                    p = 2*n + (j >> 1); d = s + 16*(j & 1) + 4*tau; first = (p == 0)
                out.append(E("v_mfma_f32_16x16x32_bf16 %s, %s, %s, %s", vr(d,4), vr(WB[g & 1]+4*j,4), xreg(p, tau), "0" if first else vr(d,4)))
        return out
    def statm(p):
        out = []
        for tau in range(4):
            out.append(E("v_mfma_f32_16x16x32_bf16 %s, %s, %s, %s", vr(SUM+4*tau,4), vr(ONES,4), xreg(p, tau), "0" if p == 0 else vr(SUM+4*tau,4)))
            out.append(E("v_mfma_f32_16x16x32_bf16 %s, %s, %s, %s", vr(GRAM+4*tau,4), xreg(p, tau), xreg(p, tau), "0" if p == 0 else vr(GRAM+4*tau,4)))
        return out
    def stats_final():
        o = []
        for tau in range(4):
            g = GRAM + 4*tau
            o.append(E("v_cndmask_b32 v%d, v%d, v%d, s[64:65]", R2+tau, g, g+1))
            o.append(E("v_cndmask_b32 v%d, v%d, v%d, s[66:67]", R2+tau, R2+tau, g+2))
            o.append(E("v_cndmask_b32 v%d, v%d, v%d, s[68:69]", R2+tau, R2+tau, g+3))
            o.append(E("v_mul_f32 v%d, %s, v%d", MEAN+tau, f32(1.0/576), SUM+4*tau))
        return o
    def stats_final2():
        o = []
        for tau in range(4):
            def f(tau=tau):
                a.e("ds_bpermute_b32 v%d, v%d, v%d", R2+tau, BP, R2+tau); lg.push("bp")
            o.append(f)
        return o
    def stats_final3():
        o = [lambda: lg.wait("bp")]
        R = lambda fmt: [E(fmt.replace("R", "v%d" % (R2+t)).replace("M", "v%d" % (MEAN+t))) for t in range(4)]
        o += R("v_mul_f32 R, %s, R" % f32(1.0/576))
        o += R("v_fma_f32 R, -M, M, R")
        o += R("v_max_f32 R, 0, R")
        o += R("v_cvt_pk_bf16_f32 R, R, M")
        o += R("v_and_b32 M, 0xffff0000, R")
        o += R("v_lshlrev_b32 R, 16, R")
        o += R("v_add_f32 R, %s, R" % f32(1e-5))
        o += R("v_cvt_pk_bf16_f32 R, R, R")
        o += R("v_lshlrev_b32 R, 16, R")
        o += R("v_sqrt_f32 R, R")
        o += R("v_cvt_pk_bf16_f32 R, R, R")
        o += R("v_lshlrev_b32 R, 16, R")
        o += R("v_rcp_f32 R, R")
        o += R("v_mul_f32 R, R, R")
        return o
    def epilogue(ps):
        s = ACC[ps & 1]; nc = 2 if ps < 4 else 1; o = []
        for c in range(nc):
            for m in range(2):
                def f(c=c, m=m):
                    a.e("ds_read_b128 %s, v%d offset:%d", vr(CSR + 8*c + 4*m, 4), CA, (2*ps + c)*128 + 64*m); lg.push(("cs", ps))
                o.append(f)
        o.append(lambda: lg.wait(("cs", ps)))
        for tau in range(4):
            for c in range(nc):
                gq = s + 32*c + 4*tau; uq = gq + 16
                for i in range(4): o.append(E("v_fma_f32 v%d, -v%d, v%d, v%d", gq+i, MEAN+tau, CSR+8*c+i, gq+i))
                for i in range(4): o.append(E("v_fma_f32 v%d, -v%d, v%d, v%d", uq+i, MEAN+tau, CSR+8*c+4+i, uq+i))
                for i in range(4): o.append(E("v_mul_f32 v%d, v%d, v%d", gq+i, R2+tau, gq+i))
                for i in range(4): o.append(E("v_mul_f32 v%d, v%d, v%d", gq+i, uq+i, gq+i))
                for i in range(2): o.append(E("v_cvt_pk_bf16_f32 v%d, v%d, v%d", HPK+4*tau+2*c+i, gq+2*i, gq+2*i+1))
            def f(tau=tau):
                if ps < 4: a.e("buffer_store_dwordx4 %s, v%d, s[28:31], s70 offen offset:%d sc1", vr(HPK+4*tau,4), L16, 1024*tau)
                else: a.e("buffer_store_dwordx2 %s, v%d, s[28:31], s71 offen offset:%d sc1", vr(HPK+4*tau,2), L8, 1024*tau)
                vm.push(("h", ps))
            o.append(f)
        if ps < 3: o.append(E("s_add_u32 s70, s70, %d", 8 << 17))
        return o
    bar = E("s_barrier")
    vm.wait([("x", 0), ("w", 0, 0), ("w", 0, 1)])
    a.e("s_barrier")
    run(xreads(0)); run(wreads(0, 0))
    wq = [(0, n) for n in range(4, 9)] + [(1, n) for n in range(9)]
    w2 = [(2, n) for n in range(9)]
    for p in range(18):
        st, n = p // 9, p % 9
        lg.wait_all()
        fill = []
        if p + 3 < 18: fill += xdma(p+3)
        if wq: fill += wdma(*wq.pop(0))
        elif w2:
            if len(w2) == 9: fill.append(E("v_add_u32 v%d, %d, v%d", WV, 2*SLOT, WV))
            for _ in range(3):
                if w2: fill += wdma(*w2.pop(0))
        if p == 2:
            fill += [lambda: vm.wait("cs"), E("v_add_f32 v32, v32, v34"), E("v_add_f32 v33, v33, v35"), E("v_add_u32 v2, %d, v2", CSL)]
            def f():
                a.e("ds_write_b64 v2, v[32:33]"); lg.push("csw")
            fill.append(f)
        if p < 17:
            q = p + 1
            fill.append(("at", 7))
            need = [("x", q)]
            if q % 2 == 0: need += [("w", q//9, q % 9), ("w", (q+1)//9, (q+1) % 9)]
            fill.append(lambda need=need: vm.wait(need))
            if q % 2 == 0: fill.append(bar)
            fill += xreads(q) + wreads(q//9, q % 9)
            anchors = mfmas(st, n)[:8] + statm(p) + mfmas(st, n)[8:]
        else:
            fill.append(("at", 10))
            fill.append(lambda: vm.wait([("w", 2, k) for k in range(9)]))
            fill.append(bar)
            fill += wreads(2, 0)
            fill += stats_final()
            anchors = statm(p) + mfmas(st, n)
        interleave(anchors, fill)
    pend = stats_final2() + [("gap",)] + stats_final3() + epilogue(0)
    for st in range(2, 9):
        dl = []
        if st == 2: dl += [(3, n) for n in range(9)]
        if st + 2 <= 8: dl += [(st+2, n) for n in range(9)]
        if st >= 4 and st % 2 == 0:
            assert not pend
            pend = epilogue(st//2 - 1)
        steps_left = 18 if (st % 2 == 0 and st < 8) else 9
        for n in range(9):
            lg.wait(("w", 9*st + n))
            fill = []
            if n < 8: fill += wreads(st, n+1)
            elif st < 8:
                fill += [lambda st=st: vm.wait([("w", st+1, k) for k in range(9)]), bar] + wreads(st+1, 0)
            k = -(-len(dl) // max(1, (8 - n))) if n < 8 else 0
            k = min(k, 3)
            for _ in range(k):
                if dl:
                    t = dl.pop(0)
                    if t[1] == 0 and t[0] % 2 == 0:
                        fill.append(E("v_add_u32 v%d, %s, v%d", WV, ("%d" % (2*SLOT)) if t[0] < 8 else "s72", WV))
                    fill += wdma(*t)
            room = 29 - len(fill)
            want = min(room, -(-len(pend) // max(1, steps_left - n - 2)) if steps_left - n - 2 > 0 else len(pend))
            if n == 0 and st % 2 == 0: fill.append(("at", 4))
            while want > 0 and pend:
                x = pend.pop(0)
                if isinstance(x, tuple): break
                fill.append(x); want -= 1
            left = interleave(mfmas(st, n), fill)
            if left: print("k3: overflow fillers st %d n %d: %d" % (st, n, left))
        assert not dl
    assert not pend
    run(epilogue(4))
    a.label(name + "_end")
    a.e("s_endpgm")
    return finish(a, name, 512, 96, 256, verbose=True), (name, (256,1,1), (256,1,1), K3_LDS)
```

```python
from common import *
SLOT = 36864
NSL = 4
HL0 = NSL*SLOT
K4_LDS = HL0 + 12288
def hreg(k, tau, h=None):
    b = 8*k + 4*tau; kind = "a"
    if k >= 32: b = 224 + 8*(k-32) + 4*tau; kind = "v"
    return vr(b, 4, kind) if h is None else vr(b + 2*h, 2, kind)

def gen_k4(name="gemm2_kernel", rot=True):
    a = Asm()
    kernel_header(a, name)
    vm = Q(a, "vmcnt", 63); lg = Q(a, "lgkmcnt", 15)
    E = lambda fmt, *x: (lambda: a.e(fmt, *x))
    def EM(fmt, *x):
        def f():
            a.e(fmt, *x); return 9
        return f
    def run(l):
        for x in l: x()
    a.e("s_load_dwordx2 s[24:25], s[0:1], 120")
    a.e("s_load_dwordx2 s[26:27], s[0:1], 104")
    a.e("s_cmp_ge_u32 s2, 256")
    a.e("s_cbranch_scc1 %s_end", name)
    ACC = 32
    WB = [104, 140]
    HR = 176
    PK = 188
    L16, L8, WV, WV0, HV, HV8 = 2, 3, 4, 5, 6, 7
    RA = [8, 9, 10]
    TR, OA, OA8, FA = 11, 12, 13, 14
    a.e("v_lshrrev_b32 v4, 6, v0")
    a.e("v_and_b32 v1, 63, v0")
    a.e("v_readfirstlane_b32 s33, v4")
    a.e("s_and_b32 s3, s2, 7")
    a.e("s_lshr_b32 s4, s2, 3")
    a.e("s_lshr_b32 s35, s3, 1")
    a.e("s_and_b32 s5, s3, 1"); a.e("s_lshl_b32 s5, s5, 3"); a.e("s_and_b32 s6, s4, 7"); a.e("s_add_u32 s34, s5, s6")
    a.e("s_lshr_b32 s36, s4, 3")
    if rot:
        a.e("s_lshl_b32 s5, s36, 1"); a.e("s_add_u32 s38, s5, s6")
    else: a.e("s_mov_b32 s38, 0")
    ST = 40
    for n in range(8):
        a.e("s_add_u32 s5, s38, %d", n); a.e("s_and_b32 s5, s5, 7"); a.e("s_add_u32 s%d, s5, 1", ST+n)
    a.e("s_mov_b32 s%d, 0", ST+8)
    DT = 50
    a.e("s_lshl_b32 s7, s35, 1")
    for n in range(8):
        a.e("s_add_u32 s5, s7, %d", n); a.e("s_and_b32 s5, s5, 7"); a.e("s_lshl_b32 s%d, s5, 10", DT+n)
    a.e("s_movk_i32 s%d, 8192", DT+8)
    a.e("v_lshlrev_b32 v%d, 4, v1", L16)
    a.e("v_lshlrev_b32 v%d, 3, v1", L8)
    a.e("s_mul_i32 s5, s36, 144"); a.e("s_mul_i32 s37, s35, 36"); a.e("s_add_u32 s5, s5, s37"); a.e("s_add_u32 s5, s5, s33")
    a.e("s_mul_i32 s5, s5, 9216"); a.e("s_add_u32 s5, s5, 0x%x", WS_WP2)
    a.e("v_add_u32 v%d, s5, v%d", WV0, L16)
    a.e("s_lshl_b32 s5, s37, 17"); a.e("s_lshl_b32 s6, s34, 13"); a.e("s_add_u32 s5, s5, s6"); a.e("s_lshl_b32 s6, s33, 11"); a.e("s_add_u32 s5, s5, s6")
    a.e("s_add_u32 s5, s5, 0x%x", WS_HP)
    a.e("v_add_u32 v%d, s5, v%d", HV, L16)
    a.e("v_add_u32 v%d, s5, v%d", HV8, L8)
    a.e("s_mul_i32 s59, s33, 9216")
    a.e("s_waitcnt lgkmcnt(0)")
    srd(a, 28, 24, WS_SIZE)
    def loads(n):
        o = [E("s_mul_i32 s60, s%d, %d", ST+n, SLOT), E("v_add_u32 v%d, s60, v%d", WV, WV0), E("s_lshl_b32 s61, s%d, 19", ST+n)]
        wl = []
        for i in range(9):
            def f(i=i):
                a.e("buffer_load_dwordx4 v%d, s[28:31], s%d offen lds", WV, DT+i); vm.push(("w", n))
            wl.append([EM("s_add_u32 m0, s59, %d", (n % NSL)*SLOT + 1024*i), f])
        hl = []
        for ks in range(4):
            k = 4*n + ks; g = []
            for tau in range(2):
                if n < 8:
                    def f(k=k, tau=tau):
                        a.e("buffer_load_dwordx4 %s, v%d, s[28:31], s61 offen offset:%d", hreg(k, tau), HV, 1024*tau); vm.push(("h", k))
                    g.append(f)
                else:
                    for h in range(2):
                        def f(k=k, tau=tau, h=h):
                            a.e("buffer_load_dwordx2 %s, v%d, s[28:31], s61 offen offset:%d", hreg(k, tau, h), HV8, 1024*tau + 512*h); vm.push(("h", k))
                        g.append(f)
            if ks < 3: g.append(E("s_add_u32 s61, s61, 0x20000"))
            hl.append(g)
        for x in wl: o += x
        for x in hl: o += x
        return o
    run(loads(0)); run(loads(1))
    a.e("v_lshrrev_b32 v15, 2, v1")
    a.e("v_and_b32 v16, 3, v1")
    a.e("v_lshlrev_b32 v17, 4, v16")
    a.e("v_lshl_add_u32 v17, v15, 12, v17")
    a.e("s_mul_i32 s5, s36, %d", 144*4096); a.e("s_lshl_b32 s6, s34, 8"); a.e("s_add_u32 s5, s5, s6"); a.e("s_lshl_b32 s6, s33, 6"); a.e("s_add_u32 s5, s5, s6")
    a.e("s_add_u32 s5, s5, 0x%x", WS_HT)
    a.e("v_add_u32 v17, s5, v17")
    a.e("s_mul_i32 s62, s33, 3072"); a.e("s_add_u32 s62, s62, %d", HL0)
    for i, n in enumerate((0, 1, 8)):
        a.e("s_add_u32 m0, s62, %d", 1024*i)
        a.e("s_lshl_b32 s5, s%d, 6", DT+n)
        a.e("buffer_load_dwordx4 v17, s[28:31], s5 offen lds"); vm.push("res")
    a.e("v_lshlrev_b32 v16, 3, v16")
    a.e("v_lshl_add_u32 v16, v15, 6, v16")
    a.e("v_add_u32 v%d, s62, v16", TR)
    run(loads(2))
    for r in range(3): a.e("v_add_u32 v%d, %d, v%d", RA[r], 49152*r, L16)
    a.e("v_and_b32 v15, 15, v0")
    a.e("v_bfe_u32 v16, v0, 4, 1")
    a.e("v_bfe_u32 v17, v0, 5, 1")
    a.e("s_movk_i32 s5, 1152")
    a.e("v_lshlrev_b32 v17, 4, v17")
    a.e("v_mad_u32_u24 v17, v15, s5, v17")
    a.e("v_lshl_add_u32 v%d, v16, 5, v17", OA)
    a.e("v_mul_u32_u24 v16, %d, v16", 16*1152)
    a.e("v_add_u32 v%d, v16, v17", OA8)
    a.e("s_lshl_b32 s5, s34, 2"); a.e("s_add_u32 s5, s5, s33"); a.e("s_mul_i32 s5, s5, %d", 32*1152)
    a.e("s_mul_i32 s6, s36, 288"); a.e("s_add_u32 s63, s5, s6")
    a.e("s_lshl_b32 s6, s35, 6"); a.e("s_add_u32 s64, s63, s6")
    a.e("s_add_u32 s65, s64, %d", 16*1152)
    srd(a, 76, 26, 2048*576*2)
    a.e("s_lshl_b32 s5, s34, 2"); a.e("s_add_u32 s5, s5, s36")
    a.e("s_lshl_b32 s6, s5, 2"); a.e("s_add_u32 s6, s6, s33"); a.e("s_lshl_b32 s66, s6, 7"); a.e("s_add_u32 s66, s66, 0x%x", WS_FLAG)
    a.e("s_mul_i32 s5, s5, %d", 16*9216); a.e("s_mul_i32 s6, s33, 9216"); a.e("s_add_u32 s5, s5, s6"); a.e("s_add_u32 s5, s5, 0x%x", WS_PART)
    for j in range(4):
        a.e("s_add_u32 s6, s35, %d", j); a.e("s_and_b32 s6, s6, 3"); a.e("s_mul_i32 s6, s6, %d", 4*9216); a.e("s_add_u32 s%d, s5, s6", 68+j)
        if j > 1: a.e("s_add_u32 s%d, s%d, %d", 68+j, 68+j, (j-1)*3072)
    a.e("s_sub_u32 s73, s33, s35"); a.e("s_and_b32 s73, s73, 3")
    a.e("s_mul_i32 s6, s33, %d", 4*9216); a.e("s_add_u32 s72, s5, s6"); a.e("s_mul_i32 s6, s73, 3072"); a.e("s_add_u32 s72, s72, s6"); a.e("s_sub_u32 s72, s72, 1024")
    a.e("v_and_b32 v%d, 3, v0", FA); a.e("v_lshlrev_b32 v%d, 2, v%d", FA, FA)
    a.e("s_mov_b32 s74, 0xffff0000")
    def wreads(k):
        n, ks = k//4, k % 4; o = []
        for i in range(9):
            off = (n % NSL)*SLOT + ks*9216 + 1024*i
            r = off // 49152; off -= 49152*r
            def f(i=i, r=r, off=off):
                a.e("ds_read_b128 %s, v%d offset:%d", vr(WB[k & 1] + 4*i, 4), RA[r], off); lg.push(("w", k))
            o.append(f)
        return o
    def mfmas(k):
        o = []
        for i in range(9):
            for tau in range(2):
                d = ACC + 8*i + 4*tau
                o.append(E("v_mfma_f32_16x16x32_bf16 %s, %s, %s, %s", vr(d,4), vr(WB[k & 1]+4*i,4), hreg(k, tau), "0" if k == 0 else vr(d,4)))
        return o
    vm.wait(("w", 0))
    a.e("s_barrier")
    run(wreads(0))
    dl = loads(3)
    for k in range(36):
        n, ks = k//4, k % 4
        vm.wait(("h", k))
        lg.wait(("w", k))
        fill = []
        if ks == 3 and n < 8:
            fill += [lambda n=n: vm.wait(("w", n+1)), E("s_barrier")]
        if k < 35: fill += wreads(k+1)
        if ks == 3:
            assert not dl
            if n + 4 <= 8: dl = loads(n+4)
        if k == 8:
            for i in range(3):
                for tau in range(2):
                    def f(i=i, tau=tau):
                        a.e("ds_read_b64_tr_b16 %s, v%d offset:%d", vr(HR+4*i+2*tau,2), TR, 1024*i + 32*tau); lg.push("res")
                    fill.append(f)
            assert vm.count("res") is None
        left = {3: 4, 0: 3, 1: 2, 2: 1}[ks]
        m = -(-len(dl)//left)
        fill += dl[:m]; dl = dl[m:]
        ov = interleave(mfmas(k), fill)
        if ov: print("k4 overflow", k, ov)
    for i in range(2, 9):
        q = PK + 4*(i-2)
        for r in range(4): a.e("v_cvt_pk_bf16_f32 v%d, v%d, v%d", q+r, ACC+8*i+2*r, ACC+8*i+2*r+1)
        if i < 8:
            a.e("buffer_store_dwordx4 %s, v%d, s[28:31], s%d offen offset:%d sc1", vr(q,4), L16, 68 + i//2, 1024*(i & 1))
    a.e("s_cmp_eq_u32 s73, 0")
    a.e("s_cbranch_scc1 %s_own8", name)
    a.e("buffer_store_dwordx4 %s, v%d, s[28:31], s72 offen sc1", vr(PK+24,4), L16)
    a.label(name + "_own8")
    def addpk(dst, src):
        for r in range(4):
            a.e("v_lshlrev_b32 v15, 16, v%d", src+r)
            a.e("v_and_b32 v16, s74, v%d", src+r)
            a.e("v_add_f32 v%d, v%d, v15", dst+2*r, dst+2*r)
            a.e("v_add_f32 v%d, v%d, v16", dst+2*r+1, dst+2*r+1)
    for i, n in enumerate((0, 1, 8)): addpk(ACC+8*n, HR+4*i)
    a.e("v_mov_b32 v17, 1")
    a.e("s_lshl_b32 s5, s35, 2")
    a.e("v_mov_b32 v18, s5")
    a.e("s_mov_b32 s75, 0x100000")
    a.e("s_waitcnt vmcnt(0)")
    a.e("s_mov_b64 exec, 1")
    a.e("buffer_store_dword v17, v18, s[28:31], s66 offen sc1")
    a.e("s_mov_b64 exec, -1")
    a.label(name + "_poll")
    a.e("buffer_load_dword v17, v%d, s[28:31], s66 offen sc1", FA)
    a.e("s_sub_u32 s75, s75, 1")
    a.e("s_cbranch_scc1 %s_go", name)
    a.e("s_waitcnt vmcnt(0)")
    a.e("v_cmp_eq_u32 vcc, 0, v17")
    a.e("s_cbranch_vccnz %s_poll", name)
    a.label(name + "_go")
    IN = 104
    a.e("s_add_u32 s5, s68, 3072"); a.e("s_add_u32 s6, s68, 6144")
    SO = ["s68", "s5", "s6"]
    a.e("s_cmp_lg_u32 s73, 0")
    a.e("s_cbranch_scc1 %s_no8", name)
    for jj in range(3):
        a.e("buffer_load_dwordx4 %s, v%d, s[28:31], %s offen offset:2048 sc1", vr(IN+24+4*jj,4), L16, SO[jj])
    a.label(name + "_no8")
    for it in range(2):
        for jj in range(3):
            a.e("buffer_load_dwordx4 %s, v%d, s[28:31], %s offen offset:%d sc1", vr(IN+12*it+4*jj,4), L16, SO[jj], 1024*it)
    for it in range(2):
        for jj in range(3):
            a.e("s_waitcnt vmcnt(%d)", 5 - 3*it - jj)
            addpk(ACC+8*it, IN+12*it+4*jj)
    for tau in range(2):
        o = 24 + 4*tau
        for it in range(2):
            for r in range(2): a.e("v_cvt_pk_bf16_f32 v%d, v%d, v%d", o+2*it+r, ACC+8*it+4*tau+2*r, ACC+8*it+4*tau+2*r+1)
        a.e("v_permlane16_swap_b32 v%d, v%d", o, o+2)
        a.e("v_permlane16_swap_b32 v%d, v%d", o+1, o+3)
        a.e("buffer_store_dwordx4 %s, v%d, s[76:79], s%d offen", vr(o,4), OA, 64+tau)
    a.e("s_cmp_lg_u32 s73, 0")
    a.e("s_cbranch_scc1 %s_end", name)
    for jj in range(3): addpk(ACC+64, IN+24+4*jj)
    for r in range(4): a.e("v_cvt_pk_bf16_f32 v%d, v%d, v%d", 20+r, ACC+64+2*r, ACC+64+2*r+1)
    a.e("v_permlane16_swap_b32 v20, v22")
    a.e("v_permlane16_swap_b32 v21, v23")
    a.e("buffer_store_dwordx4 v[20:23], v%d, s[76:79], s63 offen offset:256", OA8)
    a.label(name + "_end")
    a.e("s_endpgm")
    return finish(a, name, 512, 96, 256, verbose=False), (name, (256,1,1), (256,1,1), K4_LDS)
```

```python
class Asm:
    def __init__(self):
        self.lines = []
    def __call__(self, s):
        for l in s.split("\n"):
            self.lines.append(l)
    def e(self, fmt, *a):
        self.lines.append("    " + (fmt % a if a else fmt))
    def label(self, l):
        self.lines.append(l + ":")
    def text(self):
        return "\n".join(self.lines) + "\n"

def kernel_header(a, name):
    a(".text\n.globl %s\n.p2align 8\n.type %s,@function\n%s:" % (name, name, name))

def kernel_desc(name, vgpr, sgpr=102, accum=None, wgy=False):
    if accum is None: accum = min(256, (vgpr + 3) // 4 * 4)
    s = '.section .rodata,"a"\n.p2align 6\n.amdhsa_kernel %s\n' % name
    s += "  .amdhsa_next_free_vgpr %d\n  .amdhsa_next_free_sgpr %d\n  .amdhsa_accum_offset %d\n" % (vgpr, sgpr, accum)
    s += "  .amdhsa_group_segment_fixed_size 0\n  .amdhsa_kernarg_size 128\n  .amdhsa_user_sgpr_count 2\n  .amdhsa_user_sgpr_kernarg_segment_ptr 1\n  .amdhsa_system_sgpr_workgroup_id_x 1\n"
    if wgy: s += "  .amdhsa_system_sgpr_workgroup_id_y 1\n"
    s += "  .amdhsa_float_denorm_mode_32 3\n"
    s += ".end_amdhsa_kernel\n"
    return s
```

```python
import re
REG = re.compile(r"(?<![\w.])(-|abs\()?([vas])(\d+|\[(\d+):(\d+)\])(?![\w])")
TRANS = ("v_exp_f32","v_log_f32","v_rcp_f32","v_rsq_f32","v_sqrt_f32","v_sin_f32","v_cos_f32","v_rcp_iflag_f32")
def regs(op):
    op = op.strip()
    out = set()
    for m in REG.finditer(op):
        k = m.group(2)
        if m.group(4) is not None:
            for i in range(int(m.group(4)), int(m.group(5))+1): out.add(k+str(i))
        else: out.add(k+m.group(3))
    if re.search(r"\bvcc(_lo|_hi)?\b", op): out.add("vcc")
    if re.search(r"\bexec(_lo|_hi)?\b", op): out.add("exec")
    if re.search(r"\bm0\b", op): out.add("m0")
    return out
def split_ops(s):
    out = []; d = 0; cur = ""
    for c in s:
        if c in "[(": d += 1
        if c in "])": d -= 1
        if c == "," and d == 0: out.append(cur); cur = ""
        else: cur += c
    if cur.strip(): out.append(cur)
    return out
class I:
    def __init__(self, text):
        self.text = text
        t = text.split(";")[0].strip()
        self.label = None; self.mn = None
        self.w = set(); self.r = set(); self.ws = 1
        self.kind = None
        if not t: self.ws = 0; return
        if t.endswith(":"): self.label = t[:-1]; self.ws = 0; return
        if t.startswith("."): self.ws = 0; return
        p = t.split(None, 1)
        mn = p[0]; rest = p[1] if len(p) > 1 else ""
        self.mn = mn
        ops = split_ops(rest)
        self.mods = rest
        R = [regs(re.sub(r"\b(op_sel|op_sel_hi|neg_lo|neg_hi|quad_perm):\[[^\]]*\]", "", o)) for o in ops]
        allr = set().union(*R) if R else set()
        base = re.sub(r"_(e32|e64|dpp|sdwa)$", "", mn)
        self.base = base
        if mn == "s_nop": self.ws = int(rest.strip(), 0) + 1; self.kind = "salu"; return
        if mn.startswith("v_mfma"):
            self.kind = "mfma"; self.w = R[0]; self.ab = R[1] | R[2]; self.c = R[3] if len(R) > 3 else set(); self.r = self.ab | self.c
            self.passes = 8 if "32x32" in mn else 4
            return
        if mn.startswith("v_"):
            self.kind = "valu"
            nd = 1
            if re.match(r"v_(add|sub|subrev|addc|subb|subbrev)_co_", mn) or mn.startswith("v_div_scale") or mn.startswith("v_mad_u64"): nd = 2
            for o in R[:nd]: self.w |= o
            for o in R[nd:]: self.r |= o
            if base in ("v_swap_b32","v_permlane16_swap_b32","v_permlane32_swap_b32"): self.w = set(allr); self.r = set(allr)
            if base in ("v_fmac_f32","v_dot2c_f32_bf16","v_writelane_b32","v_pk_fmac_f16") or "dpp" in mn or "row_" in rest or "quad_perm" in rest: self.r |= R[0]
            self.dpp = ("dpp" in mn) or ("row_" in rest) or ("quad_perm" in rest) or ("wave_" in rest)
            self.trans = base in TRANS
            self.perml = base.startswith("v_permlane")
            self.dot = base.startswith("v_dot")
            self.rdlane = base in ("v_readlane_b32","v_readfirstlane_b32")
            if base.startswith("v_cmpx"): self.w.add("exec")
            self.partial = ("dst_sel:WORD" in rest or "dst_sel:BYTE" in rest)
            return
        if mn.startswith("ds_"):
            self.kind = "ds"
            if mn.startswith("ds_read") or mn.startswith("ds_bpermute") or mn.startswith("ds_permute") or mn.startswith("ds_swizzle") or "_rtn" in mn:
                self.w = R[0]; self.r = set().union(*R[1:]) if len(R) > 1 else set()
                if "d16" in mn: self.r |= R[0]
            else: self.r = allr
            return
        if mn.startswith("buffer_") or mn.startswith("global_") or mn.startswith("flat_"):
            self.kind = "vmem"
            lds = bool(re.search(r"\blds\b", rest)) or "load_lds" in mn
            self.lds = lds
            if "load" in mn and not lds:
                self.w = R[0]; self.r = set().union(*R[1:])
                if "d16" in mn: self.r |= R[0]
            elif "atomic" in mn and "sc0" in rest:
                self.w = R[0]; self.r = allr
            else:
                self.r = allr
                if lds: self.r = self.r | {"m0"}
            self.wide = None
            if "store" in mn and ("x4" in mn or "x3" in mn):
                self.wide = R[0] if mn.startswith("buffer_") else R[1]
            return
        if mn.startswith("s_"):
            self.kind = "salu"
            if mn.startswith("s_load") or mn.startswith("s_buffer_load") or mn in ("s_memtime","s_memrealtime"): self.kind = "smem"
            if mn.startswith("s_cmp") or mn.startswith("s_cbranch") or mn in ("s_branch","s_barrier","s_endpgm","s_sleep","s_setprio") or mn.startswith("s_waitcnt") or mn.startswith("s_bitcmp"):
                self.r = allr
            else:
                if R: self.w = set(R[0]); self.r = set().union(*R[1:]) if len(R) > 1 else set()
                if "saveexec" in mn: self.w.add("exec")
            self.target = None
            if mn.startswith("s_cbranch") or mn == "s_branch": self.target = rest.strip()
            return
        raise ValueError("unknown instr: " + text)

def need(p, c):
    n = 0
    isv = lambda s: {x for x in s if x[0] in "va" and x != "vcc"}
    iss = lambda s: {x for x in s if x[0] == "s" or x == "vcc"}
    if p.kind == "valu":
        wv = isv(p.w); wsg = iss(p.w)
        if c.kind == "mfma" and wv & c.r: n = max(n, 3 if p.dot else 2)
        if c.kind == "valu":
            if p.trans and wv & c.r: n = max(n, 1)
            if c.rdlane and wv & c.r: n = max(n, 1)
            if c.dpp and wv & c.r: n = max(n, 2)
            if c.perml and wv & c.r: n = max(n, 2)
            if wsg & c.r: n = max(n, 4 if c.base in ("v_readlane_b32","v_writelane_b32") else 2)
            if p.partial and wv & (c.r | c.w): n = max(n, 1)
            if p.dot and wv & (c.r | c.w):
                if not (c.base == p.base and wv == isv(c.w)): n = max(n, 3)
            if "exec" in p.w: n = max(n, 5 if c.dpp else 4)
        if c.kind in ("vmem", "ds") and p.dot and wv & c.r: n = max(n, 3)
        if c.kind == "vmem" and wsg & c.r: n = max(n, 5)
        if c.kind == "mfma" and "exec" in p.w: n = max(n, 4)
        if c.kind in ("salu", "smem") and wsg & c.r: n = max(n, 1)
    if p.kind == "mfma":
        big = p.passes + 4
        if c.kind == "mfma":
            if p.w & c.ab: n = max(n, big)
            if p.w & c.c and not (p.w == c.c and p.passes == c.passes): n = max(n, p.passes + 2)
            if p.w & c.w and not (p.w == c.w and p.passes == c.passes): n = max(n, p.passes + 2)
        elif c.kind in ("valu", "vmem", "ds"):
            if p.w & (c.r | c.w): n = max(n, big)
            if c.kind == "valu" and p.c & c.w: n = max(n, p.passes - 1)
    if p.kind == "salu" and "m0" in p.w and c.kind == "vmem" and c.lds: n = max(n, 1)
    if p.kind == "vmem" and p.wide and (p.wide & c.w): n = max(n, 2 if c.kind in ("valu","mfma") else 1)
    return n

def fix(lines, auto=True, verbose=False):
    total = 0
    while True:
        ins = [I(l) for l in lines]
        lab = {x.label: i for i, x in enumerate(ins) if x.label}
        jumps = {}
        for i, x in enumerate(ins):
            if x.kind == "salu" and getattr(x, "target", None) in lab: jumps.setdefault(lab[x.target], []).append(i)
        def preds(i):
            out = []
            if i > 0:
                q = ins[i-1]
                if not (q.mn in ("s_branch", "s_endpgm")): out.append(i-1)
            out += jumps.get(i, [])
            return out
        edits = []
        for i, c in enumerate(ins):
            if c.mn is None: continue
            worst = 0; who = None
            stack = [(j, 0) for j in preds(i)]
            seen = {}
            while stack:
                j, d = stack.pop()
                if d >= 13: continue
                if j in seen and seen[j] <= d: continue
                seen[j] = d
                p = ins[j]
                if p.mn is not None:
                    k = need(p, c) - d
                    if k > worst: worst = k; who = p
                for q in preds(j): stack.append((q, d + p.ws))
            if worst > 0:
                edits.append((i, worst, who))
                break_after = True
                lines = lines[:i] + ["    s_nop %d" % (worst-1)] + lines[i:]
                if verbose: print("nop %d before [%s] due to [%s]" % (worst, c.text.strip(), who.text.strip()))
                total += 1
                break
        if not edits: break
    return lines, total

def fix_fast(lines, verbose=False):
    total = 0
    changed = True
    while changed:
        changed = False
        ins = [I(l) for l in lines]
        lab = {x.label: i for i, x in enumerate(ins) if x.label}
        jumps = {}
        for i, x in enumerate(ins):
            if x.kind == "salu" and getattr(x, "target", None) in lab: jumps.setdefault(lab[x.target], []).append(i)
        extra = [0]*len(ins)
        def preds(i):
            out = []
            if i > 0 and ins[i-1].mn not in ("s_branch", "s_endpgm"): out.append(i-1)
            return out + jumps.get(i, [])
        for i, c in enumerate(ins):
            if c.mn is None: continue
            worst = 0; who = None
            stack = [(j, 0) for j in preds(i)]
            seen = {}
            while stack:
                j, d = stack.pop()
                if d >= 13: continue
                if j in seen and seen[j] <= d: continue
                seen[j] = d
                p = ins[j]
                if p.mn is not None:
                    k = need(p, c) - d
                    if k > worst: worst = k; who = p
                for q in preds(j): stack.append((q, d + p.ws + extra[j]))
            if worst > 0:
                extra[i] = worst; changed = True; total += 1
                if verbose: print("nop %d before [%s] due to [%s]" % (worst, c.text.strip(), who.text.strip()))
        if changed:
            nl = []
            for i, l in enumerate(lines):
                if extra[i]: nl.append("    s_nop %d" % (extra[i]-1))
                nl.append(l)
            lines = nl
    return lines, total
```

```python
import sys, struct
sys.path.insert(0, "tools")
from asmgen import Asm, kernel_header, kernel_desc
import hazard

WS_UX   = 0x0000000
WS_KT   = 0x0480000
WS_HT   = 0x0900000
WS_CS   = 0x0B40000
WS_FLAG = 0x0B60000
WS_WP1  = 0x0C00000
WS_WP2  = 0x1620000
WS_HP   = 0x1B40000
WS_PART = 0x2D40000
WS_SIZE = 0x10000000

def f32(x):
    return "0x%08x" % struct.unpack("<I", struct.pack("<f", x))[0]

def vr(b, n=1, k="v"):
    return "%s%d" % (k, b) if n == 1 else "%s[%d:%d]" % (k, b, b+n-1)

def srd(a, s, base, nbytes):
    a.e("s_mov_b32 s%d, s%d", s, base)
    a.e("s_and_b32 s%d, s%d, 0xffff", s+1, base+1)
    a.e("s_mov_b32 s%d, 0x%x", s+2, nbytes)
    a.e("s_mov_b32 s%d, 0x20000", s+3)

def finish(a, name, vgpr, sgpr=96, accum=None, verbose=False):
    lines, n = hazard.fix_fast(a.lines, verbose)
    return "\n".join(lines) + "\n" + kernel_desc(name, vgpr, sgpr, accum)

def cmul(a, d, x, y):
    a.e("v_pk_mul_f32 %s, %s, %s op_sel_hi:[1,0]", vr(d,2), vr(x,2), vr(y,2))
    a.e("v_pk_fma_f32 %s, %s, %s, %s op_sel:[1,1,0] op_sel_hi:[0,1,1] neg_lo:[1,0,0]", vr(d,2), vr(x,2), vr(y,2), vr(d,2))

class Q:
    def __init__(self, a, name, maxv):
        self.a = a; self.name = name; self.maxv = maxv; self.q = []; self.done = 0
    def push(self, tag): self.q.append(tag)
    def count(self, tags):
        if not isinstance(tags, (list, set)): tags = [tags]
        idx = [i for i, t in enumerate(self.q) if t in tags]
        if not idx: return None
        last = max(idx)
        if last < self.done: return None
        return len(self.q) - 1 - last
    def mark(self, n): self.done = max(self.done, len(self.q) - n)
    def wait(self, tags):
        n = self.count(tags)
        if n is None: return
        n = min(n, self.maxv)
        self.a.e("s_waitcnt %s(%d)", self.name, n); self.mark(n)
    def wait_all(self):
        self.a.e("s_waitcnt %s(0)", self.name); self.mark(0)

def interleave(anchors, fillers, per=2, start=0):
    f = list(fillers)
    for i, m in enumerate(anchors):
        m()
        k = 0
        while f and k < per and i >= start:
            x = f[0]
            if isinstance(x, tuple):
                if i >= x[1]: f.pop(0); continue
                break
            f.pop(0)
            r = x()
            k += 1 if r is None else r
    for x in f:
        if not isinstance(x, tuple): x()
    return len([x for x in f if not isinstance(x, tuple)])

WS_TS = 0x8000000
class Stamps:
    def __init__(self, a, kidx, base=80, on=False, lg=None):
        self.a = a; self.k = kidx; self.base = base; self.on = on; self.n = 0; self.lg = lg
    def stamp(self, n=None):
        if not self.on: return 0
        a = self.a
        n = self.n if n is None else n
        a.e("s_memrealtime s[98:99]")
        a.e("s_memtime s[100:101]")
        a.e("s_waitcnt lgkmcnt(0)")
        if self.lg: self.lg.mark(0)
        a.e("s_mov_b32 s%d, s98", self.base + 2*n)
        a.e("s_mov_b32 s%d, s100", self.base + 2*n + 1)
        self.n = n + 1
        return 0
    def flush(self, wg="s2", srd="s[28:31]", wave="s33", nw=4, drain=True):
        if not self.on: return
        a = self.a
        if drain:
            a.e("s_waitcnt vmcnt(0)")
            self.stamp()
        a.e("s_mul_i32 s98, %s, %d", wg, nw)
        a.e("s_add_u32 s98, s98, %s", wave)
        a.e("s_lshl_b32 s98, s98, 6")
        a.e("s_add_u32 s98, s98, 0x%x", WS_TS + self.k*0x100000)
        a.e("s_mov_b64 exec, 1")
        a.e("v_mov_b32 v0, 0")
        for i in range(self.n):
            a.e("v_mov_b32 v2, s%d", self.base + 2*i)
            a.e("v_mov_b32 v3, s%d", self.base + 2*i + 1)
            a.e("buffer_store_dwordx2 v[2:3], v0, %s, s98 offen offset:%d", srd, 8*i)
```

```python
from common import *
import math
NKG = 576; NLN = 256
K1_LDS = 53*544 + 16 + 2048
def gen_k1(name="prep_kernel", ts=False):
    a = Asm()
    kernel_header(a, name)
    T = Stamps(a, 0, on=ts); T.stamp()
    if ts:
        a.e("v_lshrrev_b32 v4, 6, v0"); a.e("s_mov_b32 s34, s2"); a.e("v_readfirstlane_b32 s33, v4")
    a.e("s_load_dwordx16 s[8:23], s[0:1], 0")
    a.e("s_load_dwordx2 s[24:25], s[0:1], 120")
    a.e("s_cmp_ge_u32 s2, %d", NKG)
    a.e("s_cbranch_scc1 %s_ln", name)
    a.e("s_lshl_b32 s3, s2, 8")
    a.e("v_lshl_add_u32 v1, v0, 1, s3")
    a.e("s_lshl_b32 s4, s2, 1")
    a.e("v_mov_b32 v2, s4")
    a.e("s_waitcnt lgkmcnt(0)")
    T.stamp()
    a.e("global_load_ushort v10, v2, s[22:23]")
    a.e("global_load_ushort v4, v1, s[10:11]")
    a.e("global_load_ushort v5, v1, s[12:13]")
    a.e("global_load_ushort v6, v1, s[14:15]")
    a.e("global_load_ushort v7, v1, s[16:17]")
    a.e("global_load_ushort v8, v1, s[18:19]")
    a.e("global_load_ushort v9, v1, s[20:21]")
    srd(a, 28, 24, WS_SIZE)
    TB = 53*544 + 16
    LANE, WV = 11, 12
    a.e("v_and_b32 v%d, 63, v0", LANE)
    a.e("v_lshrrev_b32 v%d, 6, v0", WV)
    GA = 64
    a.e("v_lshlrev_b32 v13, 3, v%d", LANE)
    a.e("v_sub_u32 v13, v%d, v13", WV)
    a.e("v_add_u32 v13, 2046, v13")
    a.e("v_mov_b32 v20, 128")
    a.e("s_movk_i32 s5, 0x4280")
    for p in range(4):
        for j in range(0, 8, 2):
            o = 512*p + j
            a.e("v_subrev_u32 v14, %d, v13", o)
            a.e("v_subrev_u32 v15, %d, v13", o+1)
            a.e("v_cvt_f32_i32 v16, v14")
            a.e("v_cvt_f32_i32 v17, v15")
            a.e("v_cvt_pk_bf16_f32 v16, v16, v17")
            a.e("v_bfe_i32 v17, v16, 0, 16")
            a.e("v_ashrrev_i32 v16, 16, v16")
            a.e("v_subrev_u32 v17, s5, v17")
            a.e("v_subrev_u32 v16, s5, v16")
            if p == 3:
                a.e("v_med3_i32 v17, v17, v14, v20")
                a.e("v_med3_i32 v16, v16, v15, v20")
                a.e("v_add_u32 v17, %d, v17", TB//2)
                a.e("v_add_u32 v16, %d, v16", TB//2)
            a.e("v_lshlrev_b32 v%d, 1, v17", GA + 8*p + j)
            a.e("v_lshlrev_b32 v%d, 1, v16", GA + 8*p + j + 1)
    WA, PA, QA0, QA1, C01, C23, C1, SA = 21, 22, 23, 24, 25, 26, 27, 28
    a.e("v_lshlrev_b32 v%d, 2, v0", WA)
    a.e("v_and_b32 v14, 15, v0")
    a.e("v_bfe_u32 v15, v0, 4, 2")
    a.e("v_lshlrev_b32 v16, 4, v15")
    a.e("v_lshl_add_u32 v17, v%d, 4, v14", WV)
    a.e("s_movk_i32 s6, 544")
    a.e("v_mad_u32_u24 v%d, v17, s6, v16", PA)
    a.e("v_mad_u32_u24 v%d, v14, s6, v16", QA0)
    a.e("v_min_u32 v18, 4, v14")
    a.e("v_mad_u32_u24 v%d, v18, s6, v16", QA1)
    a.e("v_lshlrev_b32 v18, 4, v17")
    a.e("v_lshl_add_u32 v%d, v15, 3, v18", C01)
    a.e("v_lshlrev_b32 v18, 3, v17")
    a.e("v_add_u32 v18, 512, v18")
    a.e("v_cmp_eq_u32 vcc, 2, v15")
    a.e("v_cndmask_b32 v%d, v%d, v18, vcc", C01, C01)
    a.e("v_lshlrev_b32 v18, 2, v17")
    a.e("v_add_u32 v18, 768, v18")
    a.e("v_cmp_eq_u32 vcc, 3, v15")
    a.e("v_cndmask_b32 v%d, v%d, v18, vcc", C01, C01)
    a.e("v_cndmask_b32 v18, 4, v20, vcc")
    a.e("v_add_u32 v%d, v%d, v18", C23, C01)
    a.e("v_lshlrev_b32 v18, 8, v15")
    a.e("v_lshl_add_u32 v%d, v17, 1, v18", C1)
    a.e("v_lshlrev_b32 v18, 12, v%d", WV)
    a.e("v_lshl_add_u32 v%d, v%d, 4, v18", SA, LANE)
    a.e("s_lshl_b32 s7, s2, 13")
    a.e("s_add_u32 s7, s7, 0x%x", WS_KT)
    a.e("v_mov_b32 v18, 0")
    a.e("v_mov_b32 v19, %d", TB-4)
    a.e("ds_write_b32 v19, v18")
    a.e("v_mov_b32 v18, 0x3f80")
    a.e("ds_write_b32 v%d, v18 offset:%d", WA, 32*544)
    T.stamp()
    a.e("s_waitcnt vmcnt(4)")
    T.stamp()
    a.e("v_lshlrev_b32 v10, 16, v10")
    a.e("v_mul_f32 v10, %s, v10", f32(math.log2(math.e)))
    a.e("v_exp_f32 v10, v10")
    a.e("v_lshlrev_b32 v4, 16, v4")
    a.e("v_lshlrev_b32 v5, 16, v5")
    a.e("v_cvt_pk_bf16_f32 v10, v10, v10")
    a.e("v_lshlrev_b32 v10, 16, v10")
    a.e("v_mul_f32 v4, v10, v4")
    a.e("v_mul_f32 v5, v10, v5")
    a.e("v_mul_f32 v4, %s, v4", f32(math.log2(math.e)))
    a.e("v_mul_f32 v5, 0.15915494, v5")
    E1, E8, E128 = 30, 32, 34
    for (E, l, t) in ((E8, 8.0, 14), (E128, 128.0, 16), (E1, 1.0, 18)):
        a.e("v_mul_f32 v%d, %s, v4", t, f32(l))
        a.e("v_mul_f32 v%d, %s, v5", t+1, f32(l))
        a.e("v_fract_f32 v%d, v%d", t+1, t+1)
        a.e("v_exp_f32 v%d, v%d", t, t)
        a.e("v_cos_f32 v%d, v%d", E, t+1)
        a.e("v_sin_f32 v%d, v%d", E+1, t+1)
    a.e("s_waitcnt vmcnt(0)")
    for r in (6, 7, 8, 9): a.e("v_lshlrev_b32 v%d, 16, v%d", r, r)
    for (E, t) in ((E8, 14), (E128, 16), (E1, 18)):
        a.e("v_pk_mul_f32 %s, %s, %s op_sel_hi:[1,0]", vr(E,2), vr(E,2), vr(t,2))
    a.e("v_pk_mul_f32 v[6:7], v[6:7], v[10:11] op_sel_hi:[1,0]")
    PAa, PAb, PBa, PBb = 36, 38, 40, 42
    cmul(a, PAa, 8, 6)
    cmul(a, PBa, PAa, E128)
    E2, E3, E4, E6, E256, E512, E768, E1024, T0, T1 = 44, 46, 48, 50, 52, 54, 56, 58, 60, 62
    Q = [(1, E1, None, None), (2, E2, E1, E1), (8, E256, E128, E128), (3, E3, E2, E1), (4, E4, E2, E2), (12, E512, E256, E256),
         (5, T0, E4, E1), (6, E6, E4, E2), (7, T1, E4, E3), (9, T0, E256, E2), (10, T1, E256, E4), (11, T0, E256, E6),
         (13, T1, E512, E4), (14, E768, E512, E256), (16, E1024, E512, E512), (15, T0, E768, E4), (17, T1, E1024, E256),
         (18, T0, E1024, E512), (19, T1, E1024, E768), (20, T0, E1024, E1024)]
    pa, pb, pan, pbn = PAa, PBa, PAb, PBb
    CV = [14, 15, 16, 17, 18, 19]; ci = [0]
    def cv():
        ci[0] = (ci[0] + 1) % len(CV); return CV[ci[0]]
    qi = 0
    for i in range(16):
        qs = Q[qi:qi+(2 if i < 4 else 1)]; qi += len(qs)
        if i < 15:
            a.e("v_pk_mul_f32 %s, %s, %s op_sel_hi:[1,0]", vr(pan,2), vr(pa,2), vr(E8,2))
            a.e("v_pk_mul_f32 %s, %s, %s op_sel_hi:[1,0]", vr(pbn,2), vr(pb,2), vr(E8,2))
        c1 = cv(); c2 = cv()
        a.e("v_cvt_pk_bf16_f32 v%d, v%d, v%d", c1, pa, pa+1)
        a.e("v_cvt_pk_bf16_f32 v%d, v%d, v%d", c2, pb, pb+1)
        if i < 15:
            for (n, o) in ((pan, pa), (pbn, pb)):
                a.e("v_pk_fma_f32 %s, %s, %s, %s op_sel:[1,1,0] op_sel_hi:[0,1,1] neg_lo:[1,0,0]", vr(n,2), vr(o,2), vr(E8,2), vr(n,2))
        a.e("ds_write_b32 v%d, v%d offset:%d", WA, c1, i*544)
        a.e("ds_write_b32 v%d, v%d offset:%d", WA, c2, (16+i)*544)
        for (row, d, x, y) in qs:
            if x is not None: cmul(a, d, x, y)
            c = cv()
            a.e("v_cvt_pk_bf16_f32 v%d, v%d, -v%d", c, d, d+1)
            a.e("ds_write_b32 v%d, v%d offset:%d", WA, c, (32+row)*544)
        pa, pan = pan, pa; pb, pbn = pbn, pb
    assert qi == len(Q)
    a.e("s_waitcnt lgkmcnt(0)")
    a.e("s_barrier")
    T.stamp()
    FR = [96, 108, 32, 44]
    def rd(ks):
        b = FR[ks % 4]
        a.e("ds_read_b128 %s, v%d offset:%d", vr(b,4), PA, ks*64)
        a.e("ds_read_b128 %s, v%d offset:%d", vr(b+4,4), QA0, 32*544 + ks*64)
        a.e("ds_read_b128 %s, v%d offset:%d", vr(b+8,4), QA1, 48*544 + ks*64)
    for ks in range(4): rd(ks)
    D0, D1 = 4, 56
    for ks in range(8):
        b = FR[ks % 4]
        a.e("s_waitcnt lgkmcnt(%d)", 3*min(3, 7-ks))
        a.e("v_mfma_f32_16x16x32_bf16 %s, %s, %s, %s", vr(D0,4), vr(b+4,4), vr(b,4), "0" if ks == 0 else vr(D0,4))
        a.e("v_mfma_f32_16x16x32_bf16 %s, %s, %s, %s", vr(D1,4), vr(b+8,4), vr(b,4), "0" if ks == 0 else vr(D1,4))
        if ks + 4 < 8: rd(ks+4)
    a.e("v_cvt_pk_bf16_f32 v14, v%d, v%d", D0, D0+1)
    a.e("v_cvt_pk_bf16_f32 v15, v%d, v%d", D0+2, D0+3)
    a.e("v_cvt_pk_bf16_f32 v16, v%d, v%d", D1, D1+1)
    a.e("v_cvt_pk_bf16_f32 v17, v%d, v%d", D1+2, D1+3)
    a.e("ds_write_b32 v%d, v14 offset:%d", C01, TB)
    a.e("ds_write_b32 v%d, v15 offset:%d", C23, TB)
    a.e("ds_write_b16 v%d, v16 offset:%d", C1, TB+1024)
    a.e("ds_write_b16_d16_hi v%d, v16 offset:%d", C1, TB+1024+64)
    a.e("ds_write_b16 v%d, v17 offset:%d", C1, TB+1024+128)
    a.e("ds_write_b16_d16_hi v%d, v17 offset:%d", C1, TB+1024+192)
    a.e("s_waitcnt lgkmcnt(0)")
    a.e("s_barrier")
    for e in range(32):
        a.e("ds_read_u16 v%d, v%d offset:%d", GA+e, GA+e, TB if e < 24 else 0)
        if e % 8 == 7 and e > 7:
            p = e//8 - 1
            a.e("s_waitcnt lgkmcnt(8)")
            for j in range(4): a.e("v_lshl_or_b32 v%d, v%d, 16, v%d", 32+4*p+j, GA+8*p+2*j+1, GA+8*p+2*j)
            a.e("buffer_store_dwordx4 %s, v%d, s[28:31], s7 offen offset:%d sc1", vr(32+4*p,4), SA, 1024*p)
    a.e("s_waitcnt lgkmcnt(0)")
    for j in range(4): a.e("v_lshl_or_b32 v%d, v%d, 16, v%d", 44+j, GA+24+2*j+1, GA+24+2*j)
    a.e("buffer_store_dwordx4 v[44:47], v%d, s[28:31], s7 offen offset:3072 sc1", SA)
    T.stamp(); T.flush("s34", nw=2)
    a.e("s_endpgm")
    a.label(name + "_ln")
    a.e("s_sub_u32 s2, s2, %d", NKG)
    a.e("s_cmp_ge_u32 s2, %d", NLN)
    a.e("s_cbranch_scc1 %s_end", name)
    a.e("v_lshrrev_b32 v1, 4, v0")
    a.e("v_and_b32 v2, 15, v0")
    a.e("v_lshlrev_b32 v2, 3, v2")
    a.e("s_movk_i32 s4, 1152")
    a.e("v_mad_u32_u24 v3, v1, s4, v2")
    a.e("s_mul_i32 s5, s2, 9216")
    a.e("v_add_u32 v3, s5, v3")
    a.e("s_waitcnt lgkmcnt(0)")
    T.stamp(1)
    X = 10
    for i in range(9):
        a.e("global_load_dwordx2 %s, v3, s[8:9] offset:%d", vr(X+2*i,2), 128*i)
    srd(a, 28, 24, WS_SIZE)
    a.e("v_lshlrev_b32 v7, 2, v0")
    a.e("v_mov_b32 v8, 0")
    a.e("s_lshl_b32 s4, s2, 9")
    a.e("s_add_u32 s4, s4, 0x%x", WS_FLAG)
    a.e("buffer_store_dword v8, v7, s[28:31], s4 offen sc1")
    a.e("s_movk_i32 s4, 1216")
    a.e("v_mad_u32_u24 v4, v1, s4, v2")
    a.e("v_bfe_u32 v7, v0, 2, 2")
    a.e("v_and_b32 v8, 1, v0")
    a.e("v_mul_u32_u24 v8, 9760, v8")
    a.e("v_mad_u32_u24 v5, v7, s4, v8")
    a.e("v_bfe_u32 v7, v0, 4, 2")
    a.e("v_bfe_u32 v8, v0, 1, 1")
    a.e("v_lshl_add_u32 v7, v7, 1, v8")
    a.e("v_lshl_add_u32 v5, v7, 3, v5")
    a.e("v_lshrrev_b32 v7, 6, v0")
    a.e("v_mul_u32_u24 v8, 576, v7")
    a.e("v_add_u32 v5, v5, v8")
    a.e("s_lshr_b32 s5, s2, 1")
    a.e("v_add_u32 v8, s5, v0")
    a.e("v_and_b32 v8, 7, v8")
    a.e("v_lshlrev_b32 v8, 4, v8")
    a.e("v_bfe_u32 v9, v0, 3, 3")
    a.e("v_mad_u32_u24 v9, v7, 64, v9")
    a.e("v_lshl_add_u32 v9, v7, 3, v9")
    a.e("v_lshl_add_u32 v6, v9, 15, v8")
    a.e("s_lshl_b32 s6, s2, 7")
    a.e("s_add_u32 s6, s6, 0x%x", WS_UX)
    F = 32
    a.e("s_mov_b32 s7, 0xffff0000")
    for i in range(9):
        a.e("s_waitcnt vmcnt(%d)", 9-i)
        for h in range(2):
            a.e("v_lshlrev_b32 v%d, 16, v%d", F+4*i+2*h, X+2*i+h)
            a.e("v_and_b32 v%d, s7, v%d", F+4*i+2*h+1, X+2*i+h)
        a.e("ds_write_b64 v4, %s offset:%d", vr(X+2*i,2), 9760 + 128*i)
        if i == 0:
            a.e("v_pk_add_f32 v[28:29], %s, %s", vr(F,2), vr(F+2,2))
        else:
            a.e("v_pk_add_f32 v[30:31], %s, %s", vr(F+4*i,2), vr(F+4*i+2,2))
            a.e("v_pk_add_f32 v[28:29], v[28:29], v[30:31]")
    T.stamp()
    def red16(r):
        for sh in (8, 4, 2, 1):
            a.e("v_add_f32_dpp v%d, v%d, v%d row_ror:%d row_mask:0xf bank_mask:0xf", r, r, r, sh)
    a.e("v_add_f32 v28, v28, v29")
    red16(28)
    a.e("v_mul_f32 v28, %s, v28", f32(1.0/576))
    a.e("v_cvt_pk_bf16_f32 v70, v28, v28")
    a.e("v_lshlrev_b32 v70, 16, v70")
    for i in range(18):
        t = 72 + 2*(i % 2)
        a.e("v_pk_add_f32 %s, %s, v[28:29] op_sel_hi:[1,0] neg_lo:[0,1] neg_hi:[0,1]", vr(t,2), vr(F+2*i,2))
        s = 76 + 2*(i % 2)
        if i < 2: a.e("v_pk_mul_f32 %s, %s, %s", vr(s,2), vr(t,2), vr(t,2))
        else: a.e("v_pk_fma_f32 %s, %s, %s, %s", vr(s,2), vr(t,2), vr(t,2), vr(s,2))
        a.e("v_pk_add_f32 %s, %s, v[70:71] op_sel_hi:[1,0] neg_lo:[0,1] neg_hi:[0,1]", vr(F+2*i,2), vr(F+2*i,2))
    a.e("v_pk_add_f32 v[76:77], v[76:77], v[78:79]")
    a.e("v_add_f32 v76, v76, v77")
    def rnd(i):
        a.e("v_cvt_pk_bf16_f32 v%d, v%d, v%d", F+2*i+1, F+2*i, F+2*i+1)
        a.e("v_lshlrev_b32 v%d, 16, v%d", F+2*i, F+2*i+1)
        a.e("v_and_b32 v%d, s7, v%d", F+2*i+1, F+2*i+1)
    chain = ["v_add_f32_dpp v76, v76, v76 row_ror:%d row_mask:0xf bank_mask:0xf" % sh for sh in (8,4,2,1)]
    chain += ["v_mul_f32 v76, %s, v76" % f32(1.0/576), "v_cvt_pk_bf16_f32 v76, v76, v76", "v_lshlrev_b32 v76, 16, v76",
              "v_add_f32 v76, %s, v76" % f32(1e-5), "v_cvt_pk_bf16_f32 v76, v76, v76", "v_lshlrev_b32 v76, 16, v76",
              "v_sqrt_f32 v76, v76", "v_cvt_pk_bf16_f32 v76, v76, v76", "v_lshlrev_b32 v76, 16, v76", "v_rcp_f32 v76, v76"]
    for i in range(18):
        rnd(i)
        if i < len(chain): a.e(chain[i])
    for i in range(9):
        for h in range(2):
            a.e("v_pk_mul_f32 %s, %s, v[76:77] op_sel_hi:[1,0]", vr(F+4*i+2*h,2), vr(F+4*i+2*h,2))
        a.e("v_cvt_pk_bf16_f32 v%d, v%d, v%d", F+4*i, F+4*i, F+4*i+1)
        a.e("v_cvt_pk_bf16_f32 v%d, v%d, v%d", F+4*i+1, F+4*i+2, F+4*i+3)
        a.e("ds_write_b64 v4, %s offset:%d", vr(F+4*i,2), 128*i)
    a.e("s_waitcnt lgkmcnt(0)")
    a.e("s_barrier")
    T.stamp()
    for k in range(9):
        a.e("ds_read_b64_tr_b16 %s, v5 offset:%d", vr(F+4*k,2), 64*k)
        a.e("ds_read_b64_tr_b16 %s, v5 offset:%d", vr(F+4*k+2,2), 64*k + 4*1216)
        if k >= 4:
            a.e("s_waitcnt lgkmcnt(8)")
            a.e("buffer_store_dwordx4 %s, v6, s[28:31], s6 offen sc1", vr(F+4*(k-4),4))
            a.e("s_add_u32 s6, s6, 0x40000")
    for k in range(5, 9):
        a.e("s_waitcnt lgkmcnt(%d)", 2*(8-k))
        a.e("buffer_store_dwordx4 %s, v6, s[28:31], s6 offen sc1", vr(F+4*k,4))
        a.e("s_add_u32 s6, s6, 0x40000")
    T.stamp(); T.flush("s34", nw=2)
    a.label(name + "_end")
    a.e("s_endpgm")
    return finish(a, name, 128, 102 if ts else 48), (name, (NKG+NLN,1,1), (128,1,1), K1_LDS)
```

```python
from common import *
NCONV = 144; NPK1 = 72; NPK2 = 36
U0 = 3840
KB0 = U0 + 32768
K2_LDS = KB0 + 8*4160
def gen_conv(a, name, T):
    LANE, G, M = 1, 2, 3
    a.e("v_lshlrev_b32 v4, 4, v%d", LANE)
    a.e("s_lshl_b32 s4, s2, 2")
    a.e("s_add_u32 s4, s4, s33")
    a.e("s_lshl_b32 s5, s4, 13")
    a.e("s_add_u32 s5, s5, 0x%x", WS_KT)
    a.e("s_mul_i32 s6, s33, 8320")
    a.e("s_add_u32 s6, s6, %d", KB0)
    a.e("s_lshl_b32 s7, s2, 15")
    a.e("s_lshl_b32 s34, s33, 13")
    a.e("s_add_u32 s7, s7, s34")
    a.e("s_add_u32 s7, s7, 0x%x", WS_UX)
    a.e("s_add_u32 s34, s34, %d", U0)
    a.e("s_lshl_b32 s35, s4, 1")
    a.e("v_mov_b32 v5, s35")
    a.e("s_waitcnt lgkmcnt(0)")
    T.stamp(1)
    srd(a, 28, 24, WS_SIZE)
    for h in range(2):
        a.e("s_add_u32 m0, s34, %d", 4096*h)
        for k in range(4): a.e("buffer_load_dwordx4 v4, s[28:31], s7 offen offset:%d lds", 1024*k)
        a.e("s_add_u32 m0, s6, %d", 4160*h)
        a.e("s_add_u32 s7, s7, 4096")
        for k in range(4): a.e("buffer_load_dwordx4 v4, s[28:31], s5 offen offset:%d lds", 1024*k)
        a.e("s_add_u32 s5, s5, 4096")
    a.e("global_load_ushort v6, v5, s[8:9]")
    for r in range(8, 12): a.e("v_mov_b32 v%d, 0", r)
    a.e("v_min_u32 v7, 239, v0")
    a.e("v_lshlrev_b32 v7, 4, v7")
    a.e("ds_write_b128 v7, v[8:11]")
    a.e("v_bfe_u32 v7, v0, 2, 1")
    a.e("v_mul_u32_u24 v7, 4160, v7")
    a.e("v_and_b32 v12, 3, v0")
    a.e("v_lshl_add_u32 v7, v12, 4, v7")
    a.e("v_add_u32 v7, s6, v7")
    a.e("ds_write_b128 v7, v[8:11] offset:4096")
    KA = 12
    a.e("v_and_b32 v7, 1, v%d", M)
    a.e("v_mul_u32_u24 v8, 4162, v7")
    a.e("v_lshlrev_b32 v9, 1, v%d", M)
    a.e("v_sub_u32 v8, v8, v9")
    a.e("v_lshl_add_u32 v8, v%d, 4, v8", G)
    a.e("v_add_u32 v8, s6, v8")
    for ip in range(4): a.e("v_add_u32 v%d, %d, v8", KA+ip, 4060 - 960 - 1024*ip)
    UA = 16
    a.e("v_lshl_add_u32 v7, v%d, 1, v%d", M, G)
    a.e("v_lshlrev_b32 v7, 7, v7")
    a.e("v_lshrrev_b32 v8, 1, v%d", G)
    a.e("v_add3_u32 v8, v8, v%d, s33", M)
    for r in range(4):
        a.e("v_add_u32 v9, %d, v8", (8 - 1 - 2*r) % 8)
        a.e("v_and_b32 v9, 7, v9")
        a.e("v_lshl_add_u32 v9, v9, 4, v7")
        a.e("v_add_u32 v%d, %d, v9", UA+r, U0 - 256 - 512*r - 2048)
    ZU, ZX, ST = 20, 21, 22
    a.e("v_lshrrev_b32 v8, 1, v%d", G)
    a.e("v_lshl_add_u32 v7, v%d, 1, v8", M)
    a.e("v_lshlrev_b32 v%d, 4, v7", ST)
    a.e("v_lshlrev_b32 v7, 7, v7")
    a.e("v_and_b32 v9, 1, v%d", G)
    a.e("v_lshl_add_u32 v7, v9, 3, v7")
    a.e("v_lshl_add_u32 v%d, v9, 9, v%d", ST, ST)
    a.e("v_add_u32 v8, s33, v%d", M)
    a.e("v_and_b32 v8, 7, v8")
    a.e("v_lshl_add_u32 v%d, v8, 4, v7", ZU)
    a.e("v_xor_b32 v%d, 64, v%d", ZX, ZU)
    a.e("s_lshl_b32 s7, s4, 12")
    a.e("s_add_u32 s7, s7, 0x%x", WS_HT)
    a.e("s_mov_b32 s36, 0xffff0000")
    ACC, Z, ZT = 32, 64, 24
    KF = [96, 160]; UF = [128, 192]
    def reads(rho):
        b = rho & 1; out = []
        for i in range(8):
            out.append("ds_read_b128 %s, v%d offset:%d" % (vr(UF[b]+4*i,4), UA + rho % 4, 4096*i + (2048 if rho < 4 else 0)))
            o = (512*(1 - (i & 1)) + 64*(7 - rho))//4
            out.append("ds_read2_b32 %s, v%d offset0:%d offset1:%d" % (vr(KF[b]+4*i,2), KA + i//2, o, o+1))
            out.append("ds_read2_b32 %s, v%d offset0:%d offset1:%d" % (vr(KF[b]+4*i+2,2), KA + i//2, o+2, o+3))
        return out
    T.stamp()
    a.e("s_waitcnt vmcnt(0) lgkmcnt(0)")
    a.e("s_barrier")
    T.stamp()
    a.e("v_lshlrev_b32 v6, 16, v6")
    for r in reads(0): a.e(r)
    for rho in range(8):
        b = rho & 1
        fill = ["ds_read_b64 %s, v%d offset:%d" % (vr(ZT,2), ZU, U0 + 4096*rho), "ds_read_b64 %s, v%d offset:%d" % (vr(ZT+2,2), ZX, U0 + 4096*rho)]
        if rho < 7: fill += reads(rho+1)
        z = Z + 4*rho
        val = ["s_waitcnt lgkmcnt(%d)" % (15 if rho < 7 else 0)]
        for h in range(2):
            val += ["v_lshlrev_b32 v%d, 16, v%d" % (ZT+4, ZT+h), "v_and_b32 v%d, s36, v%d" % (ZT+5, ZT+h),
                    "v_lshlrev_b32 v%d, 16, v%d" % (z+2*h, ZT+2+h), "v_and_b32 v%d, s36, v%d" % (z+2*h+1, ZT+2+h),
                    "v_fmac_f32 v%d, v6, v%d" % (z+2*h, ZT+4), "v_fmac_f32 v%d, v6, v%d" % (z+2*h+1, ZT+5)]
        a.e("s_waitcnt lgkmcnt(0)")
        n = 0
        for i in range(8):
            for dl in range(8 - i):
                mt = i + dl
                c = "0" if (rho == 0 and i == 0) else vr(ACC+4*mt,4)
                a.e("v_mfma_f32_16x16x32_bf16 %s, %s, %s, %s", vr(ACC+4*mt,4), vr(KF[b]+4*i,4), vr(UF[b]+4*dl,4), c)
                if fill: a.e(fill.pop(0))
                elif n >= 8:
                    for _ in range(2):
                        if val: a.e(val.pop(0))
                n += 1
        assert not fill and not val
    T.stamp()
    for pr in range(4):
        for mt in (2*pr, 2*pr+1):
            for h in range(2):
                a.e("v_pk_add_f32 %s, %s, %s", vr(Z+4*mt+2*h,2), vr(Z+4*mt+2*h,2), vr(ACC+4*mt+2*h,2))
        o = 96 + 4*pr
        for q in range(4): a.e("v_cvt_pk_bf16_f32 v%d, v%d, v%d", o+q, Z+8*pr+2*q, Z+8*pr+2*q+1)
        a.e("v_permlane16_swap_b32 v%d, v%d", o, o+2)
        a.e("v_permlane16_swap_b32 v%d, v%d", o+1, o+3)
        a.e("buffer_store_dwordx4 %s, v%d, s[28:31], s7 offen offset:%d sc1", vr(o,4), ST, 1024*pr)
    T.stamp(); T.flush("s60")
    a.e("s_endpgm")

def gen_pack(a, name, T):
    LANE, G, M = 1, 2, 3
    a.e("v_lshrrev_b32 v5, 3, v%d", LANE)
    a.e("v_and_b32 v6, 6, v5")
    a.e("v_xor_b32 v6, v6, v%d", LANE)
    a.e("v_and_b32 v6, 7, v6")
    a.e("v_lshlrev_b32 v6, 4, v6")
    a.e("s_waitcnt lgkmcnt(0)")
    T.stamp(1)
    srd(a, 28, 24, WS_SIZE)
    a.e("s_cmp_ge_u32 s2, %d", NPK1)
    a.e("s_cbranch_scc1 %s_pd", name)
    a.e("s_and_b32 s4, s2, 1")
    a.e("s_cmp_eq_u32 s4, 0")
    a.e("s_cselect_b32 s40, s12, s14")
    a.e("s_cselect_b32 s41, s13, s15")
    a.e("s_and_b32 s5, s2, 0xfe")
    a.e("s_and_b32 s6, s33, 1")
    a.e("s_add_u32 s5, s5, s6")
    a.e("s_lshr_b32 s6, s33, 1")
    a.e("s_movk_i32 s47, 9216")
    a.e("s_mul_i32 s44, s6, %d", 288*9216)
    a.e("s_lshl_b32 s7, s5, 7")
    a.e("s_add_u32 s44, s44, s7")
    a.e("s_add_u32 s45, s44, %d", 16*9216)
    a.e("s_mov_b32 s46, %d", 32*9216)
    a.e("s_mul_i32 s48, s5, %d", 4*36864)
    a.e("s_mul_i32 s7, s6, %d", 9*2048)
    a.e("s_add_u32 s48, s48, s7")
    a.e("s_lshl_b32 s7, s4, 10")
    a.e("s_add_u32 s48, s48, s7")
    a.e("s_add_u32 s48, s48, 0x%x", WS_WP1)
    a.e("s_mul_i32 s52, s6, 36864")
    a.e("s_lshl_b32 s7, s5, 9")
    a.e("s_add_u32 s52, s52, s7")
    a.e("s_lshl_b32 s7, s4, 6")
    a.e("s_add_u32 s52, s52, s7")
    a.e("s_add_u32 s52, s52, 0x%x", WS_CS)
    a.e("s_mov_b32 s53, 1")
    a.e("s_branch %s_pgo", name)
    a.label(name + "_pd")
    a.e("s_mov_b32 s40, s16")
    a.e("s_mov_b32 s41, s17")
    a.e("s_sub_u32 s4, s2, %d", NPK1)
    a.e("s_lshl_b32 s4, s4, 2")
    a.e("s_add_u32 s4, s4, s33")
    a.e("s_mul_i32 s5, s4, 1821")
    a.e("s_lshr_b32 s5, s5, 16")
    a.e("s_mul_i32 s6, s5, 36")
    a.e("s_sub_u32 s6, s4, s6")
    a.e("s_movk_i32 s47, 1152")
    a.e("s_sub_u32 s7, s6, 4")
    a.e("s_and_b32 s34, s7, 7")
    a.e("s_lshr_b32 s35, s7, 3")
    a.e("s_lshl_b32 s35, s35, 5")
    a.e("s_lshl_b32 s36, s6, 1")
    a.e("s_cmp_lt_u32 s6, 4")
    a.e("s_cselect_b32 s34, s36, s34")
    a.e("s_cselect_b32 s35, 128, s35")
    a.e("s_cselect_b32 s36, %d, %d", 9, 1)
    a.e("s_mul_i32 s36, s36, %d", 16*1152)
    a.e("s_lshl_b32 s5, s5, 3")
    a.e("s_add_u32 s34, s34, s5")
    a.e("s_mul_i32 s34, s34, 144")
    a.e("s_add_u32 s34, s34, s35")
    a.e("s_mul_i32 s44, s34, 1152")
    a.e("s_add_u32 s45, s44, s36")
    a.e("s_movk_i32 s46, 128")
    a.e("s_mul_i32 s48, s4, 9216")
    a.e("s_add_u32 s48, s48, 0x%x", WS_WP2)
    a.e("s_mov_b32 s52, 0")
    a.e("s_mov_b32 s53, 0")
    a.label(name + "_pgo")
    a.e("s_and_b32 s41, s41, 0xffff")
    a.e("s_mov_b32 s42, %d", 576*4608*2)
    a.e("s_mov_b32 s43, 0x20000")
    a.e("v_mad_u32_u24 v4, v5, s47, v6")
    a.e("s_lshl_b32 s49, s47, 3")
    a.e("v_add_u32 v7, s49, v4")
    a.e("s_lshl_b32 s50, s33, 14")
    def dma(t):
        a.e("s_add_u32 m0, s50, %d", (t % 4)*4096)
        a.e("buffer_load_dwordx4 v4, s[40:43], s44 offen lds")
        a.e("s_add_u32 m0, s50, %d", (t % 4)*4096 + 1024)
        a.e("buffer_load_dwordx4 v7, s[40:43], s44 offen lds")
        a.e("s_add_u32 m0, s50, %d", (t % 4)*4096 + 2048)
        a.e("buffer_load_dwordx4 v4, s[40:43], s45 offen lds")
        a.e("s_add_u32 m0, s50, %d", (t % 4)*4096 + 3072)
        a.e("buffer_load_dwordx4 v7, s[40:43], s45 offen lds")
        a.e("s_add_u32 s44, s44, s46")
        a.e("s_add_u32 s45, s45, s46")
    for t in range(4): dma(t)
    TA = 8
    a.e("v_lshrrev_b32 v12, 2, v%d", LANE)
    a.e("v_and_b32 v13, 6, v12")
    a.e("v_lshlrev_b32 v13, 4, v13")
    a.e("v_and_b32 v14, 3, v%d", LANE)
    a.e("v_lshlrev_b32 v14, 3, v14")
    a.e("v_lshl_add_u32 v14, v12, 7, v14")
    a.e("v_add_u32 v14, s50, v14")
    for tau in range(4):
        a.e("v_xor_b32 v15, %d, v13", 32*tau)
        a.e("v_add_u32 v%d, v14, v15", TA+tau)
    a.e("v_lshlrev_b32 v16, 4, v%d", LANE)
    for tau in range(4): a.e("v_mov_b32 v%d, 0", 20+tau)
    a.e("s_mov_b32 s51, 0x3f803f80")
    FB = [32, 48]
    q = []
    for t in range(4): q += [("d", t)]*4
    for t in range(9):
        last = max(i for i, x in enumerate(q) if x == ("d", t))
        a.e("s_waitcnt vmcnt(%d)", len(q) - 1 - last)
        if t in (0, 4): T.stamp()
        b = FB[t & 1]
        for tau in range(4):
            a.e("ds_read_b64_tr_b16 %s, v%d offset:%d", vr(b+4*tau,2), TA+tau, (t % 4)*4096)
            a.e("ds_read_b64_tr_b16 %s, v%d offset:%d", vr(b+4*tau+2,2), TA+tau, (t % 4)*4096 + 2048)
        a.e("s_waitcnt lgkmcnt(0)")
        if t + 4 < 9:
            dma(t+4); q += [("d", t+4)]*4
        for tau in range(4):
            dl = 4*t + tau
            a.e("s_cmp_eq_u32 s53, 1")
            a.e("s_mov_b32 s4, %d", tau*36864 + t*2048)
            a.e("s_cselect_b32 s4, s4, %d", (dl//9)*144*9216 + (dl % 9)*1024)
            a.e("s_add_u32 s4, s4, s48")
            a.e("buffer_store_dwordx4 %s, v16, s[28:31], s4 offen sc1", vr(b+4*tau,4))
            q.append(("s", t))
            for r in range(4): a.e("v_dot2c_f32_bf16 v%d, s51, v%d", 20+tau, b+4*tau+r)
    a.e("s_cmp_eq_u32 s53, 0")
    a.e("s_cbranch_scc1 %s_pend", name)
    for tau in range(4): a.e("v_mov_b32 v%d, v%d", 24+tau, 20+tau)
    for tau in range(4): a.e("v_permlane32_swap_b32 v%d, v%d", 20+tau, 24+tau)
    for tau in range(4): a.e("v_add_f32 v%d, v%d, v%d", 20+tau, 20+tau, 24+tau)
    for tau in range(4): a.e("v_mov_b32 v%d, v%d", 24+tau, 20+tau)
    for tau in range(4): a.e("v_permlane16_swap_b32 v%d, v%d", 20+tau, 24+tau)
    for tau in range(4): a.e("v_add_f32 v%d, v%d, v%d", 20+tau, 20+tau, 24+tau)
    for tau in range(1, 4):
        a.e("v_cmp_eq_u32 vcc, %d, v%d", tau, G)
        a.e("v_cndmask_b32 v20, v20, v%d, vcc", 20+tau)
    a.e("v_lshlrev_b32 v5, 2, v%d", M)
    a.e("v_lshl_add_u32 v5, v%d, 7, v5", G)
    a.e("buffer_store_dword v20, v5, s[28:31], s52 offen sc1")
    a.label(name + "_pend")
    T.stamp(); T.flush("s60")

def gen_k2(name="conv_kernel", ts=False):
    a = Asm()
    kernel_header(a, name)
    T = Stamps(a, 1, on=ts); T.stamp()
    a.e("s_mov_b32 s60, s2")
    a.e("s_load_dwordx8 s[8:15], s[0:1], 64")
    a.e("s_load_dwordx2 s[16:17], s[0:1], 96")
    a.e("s_load_dwordx2 s[24:25], s[0:1], 120")
    a.e("v_lshrrev_b32 v4, 6, v0")
    a.e("v_and_b32 v1, 63, v0")
    a.e("v_readfirstlane_b32 s33, v4")
    a.e("v_bfe_u32 v2, v0, 4, 2")
    a.e("v_and_b32 v3, 15, v0")
    a.e("s_cmp_ge_u32 s2, %d", NCONV)
    a.e("s_cbranch_scc1 %s_pack", name)
    gen_conv(a, name, T)
    a.label(name + "_pack")
    a.e("s_sub_u32 s2, s2, %d", NCONV)
    a.e("s_cmp_ge_u32 s2, %d", NPK1 + NPK2)
    a.e("s_cbranch_scc1 %s_end", name)
    gen_pack(a, name, T)
    a.label(name + "_end")
    a.e("s_endpgm")
    return finish(a, name, 224, 102 if ts else 64), (name, (NCONV+NPK1+NPK2,1,1), (256,1,1), 98304)
```

```python
from common import *
SLOT = 36864
XS0 = 3*SLOT
CSL = XS0 + 49152
K3_LDS = CSL + 1280
def xreg(p, tau):
    return vr(16*p + 4*tau, 4, "a") if p < 16 else vr(224 + 16*(p-16) + 4*tau, 4)
def xhalf(p, tau, h):
    return vr(16*p + 4*tau + 2*h, 2, "a") if p < 16 else vr(224 + 16*(p-16) + 4*tau + 2*h, 2)

def gen_k3(name="gemm1_kernel", rot=True, ts=False):
    a = Asm()
    kernel_header(a, name)
    vm = Q(a, "vmcnt", 63); lg = Q(a, "lgkmcnt", 15)
    E = lambda fmt, *x: (lambda: a.e(fmt, *x))
    def EM(fmt, *x):
        def f():
            a.e(fmt, *x); return 9
        return f
    T = Stamps(a, 2, on=ts, lg=lg); T.stamp()
    a.e("s_load_dwordx2 s[24:25], s[0:1], 120")
    a.e("s_cmp_ge_u32 s2, 256")
    a.e("s_cbranch_scc1 %s_end", name)
    ACC = [96, 160]
    WB = [64, 80]
    HPK = 48; CSR = 32; MEAN = 24; R2 = 28
    XA = 4
    TA = 8
    WV = 12
    RA = [13, 14]
    CA = 15; L16 = 16; L8 = 17; BP = 18; T0 = 19
    ONES = 20
    a.e("v_lshrrev_b32 v4, 6, v0")
    a.e("v_and_b32 v1, 63, v0")
    a.e("v_readfirstlane_b32 s33, v4")
    a.e("s_and_b32 s3, s2, 7")
    a.e("s_lshr_b32 s4, s2, 3")
    a.e("s_and_b32 s5, s3, 1"); a.e("s_lshl_b32 s5, s5, 2"); a.e("s_and_b32 s6, s4, 3"); a.e("s_add_u32 s34, s5, s6")
    a.e("s_lshr_b32 s35, s3, 1")
    a.e("s_lshr_b32 s36, s4, 2")
    a.e("s_lshl_b32 s5, s35, 3"); a.e("s_add_u32 s37, s5, s36")
    if rot:
        a.e("s_lshl_b32 s5, s36, 1"); a.e("s_mul_i32 s6, s6, 5"); a.e("s_add_u32 s38, s5, s6")
        a.e("s_sub_u32 s5, s38, 18"); a.e("s_cmp_ge_u32 s38, 18"); a.e("s_cselect_b32 s38, s5, s38")
    else:
        a.e("s_mov_b32 s38, 0")
    KO = 40
    a.e("s_lshl_b32 s%d, s38, 11", KO)
    for p in range(1, 18):
        a.e("s_add_u32 s%d, s%d, 2048", KO+p, KO+p-1)
        a.e("s_cmp_eq_u32 s%d, %d", KO+p, SLOT)
        a.e("s_cselect_b32 s%d, 0, s%d", KO+p, KO+p)
    a.e("v_lshrrev_b32 v2, 3, v1")
    a.e("v_and_b32 v3, 6, v2")
    a.e("v_xor_b32 v3, v3, v1")
    a.e("v_and_b32 v3, 7, v3")
    a.e("v_lshlrev_b32 v3, 4, v3")
    a.e("v_lshl_add_u32 v3, v2, 12, v3")
    a.e("s_lshl_b32 s5, s34, 9"); a.e("s_lshl_b32 s6, s33, 7"); a.e("s_add_u32 s5, s5, s6"); a.e("s_add_u32 s5, s5, 0x%x", WS_HT)
    a.e("v_add_u32 v%d, s5, v3", XA)
    for j in range(1, 4): a.e("v_add_u32 v%d, %d, v%d", XA+j, 32768*j - 1024*j, XA)
    a.e("v_lshlrev_b32 v%d, 4, v1", L16)
    a.e("s_mul_i32 s5, s37, %d", 9*SLOT)
    a.e("s_lshr_b32 s39, s33, 1")
    a.e("s_mul_i32 s6, s39, %d", SLOT); a.e("s_add_u32 s5, s5, s6")
    a.e("s_and_b32 s6, s33, 1"); a.e("s_lshl_b32 s6, s6, 10"); a.e("s_add_u32 s5, s5, s6"); a.e("s_add_u32 s5, s5, 0x%x", WS_WP1)
    a.e("v_add_u32 v%d, s5, v%d", WV, L16)
    a.e("s_lshl_b32 s58, s33, 10")
    a.e("s_mul_i32 s59, s33, 12288"); a.e("s_add_u32 s59, s59, %d", XS0)
    a.e("s_waitcnt lgkmcnt(0)")
    T.stamp()
    srd(a, 28, 24, WS_SIZE)
    def xdma(p):
        out = [E("s_lshl_b32 s60, s%d, 6", KO+p), EM("s_add_u32 m0, s59, %d", (p % 3)*4096)]
        for j in range(4):
            def f(j=j):
                a.e("buffer_load_dwordx4 v%d, s[28:31], s60 offen offset:%d lds", XA+j, 1024*j); vm.push(("x", p))
            out.append(f)
        return out
    def wdma(st, n):
        out = []
        if st < 8: so = "s%d" % (KO + 9*(st & 1) + n)
        else:
            out.append(E("s_cmp_eq_u32 s39, 0"))
            out.append(E("s_cselect_b32 s61, s%d, s%d", KO+2*n, KO+2*n+1)); so = "s61"
        out.append(EM("s_add_u32 m0, s58, %d", (st % 3)*SLOT + 4096*n))
        def f():
            a.e("buffer_load_dwordx4 v%d, s[28:31], %s offen lds", WV, so); vm.push(("w", st, n))
        out.append(f)
        return out
    def run(l):
        for x in l: x()
    run(wdma(0, 0)); run(xdma(0)); run(wdma(0, 1)); run(xdma(1)); run(wdma(0, 2)); run(xdma(2)); run(wdma(0, 3))
    a.e("v_min_u32 v2, 143, v0")
    a.e("v_lshlrev_b32 v2, 3, v2")
    a.e("s_mul_i32 s5, s37, 1152"); a.e("s_add_u32 s5, s5, 0x%x", WS_CS); a.e("s_add_u32 s6, s5, 36864")
    a.e("buffer_load_dwordx2 v[32:33], v2, s[28:31], s5 offen"); vm.push("cs")
    a.e("buffer_load_dwordx2 v[34:35], v2, s[28:31], s6 offen"); vm.push("cs")
    a.e("v_lshrrev_b32 v19, 2, v1")
    a.e("v_and_b32 v20, 6, v19"); a.e("v_lshlrev_b32 v20, 4, v20")
    a.e("v_and_b32 v21, 3, v1"); a.e("v_lshlrev_b32 v21, 3, v21")
    a.e("v_lshl_add_u32 v21, v19, 7, v21")
    a.e("v_add_u32 v21, s59, v21")
    for tau in range(4):
        a.e("v_xor_b32 v22, %d, v20", 32*tau)
        a.e("v_add_u32 v%d, v21, v22", TA+tau)
    a.e("v_mov_b32 v%d, v%d", RA[0], L16)
    a.e("v_add_u32 v%d, %d, v%d", RA[1], 49152, L16)
    a.e("v_bfe_u32 v19, v0, 4, 2")
    a.e("v_lshlrev_b32 v%d, 4, v19", CA)
    a.e("v_add_u32 v%d, %d, v%d", CA, CSL, CA)
    a.e("v_lshlrev_b32 v%d, 3, v1", L8)
    a.e("v_and_b32 v19, 15, v0")
    a.e("v_and_b32 v20, 12, v19")
    a.e("v_lshl_add_u32 v19, v20, 2, v19")
    a.e("v_lshlrev_b32 v%d, 2, v19", BP)
    a.e("v_and_b32 v19, 3, v0")
    for r in range(1, 4): a.e("v_cmp_eq_u32 s[%d:%d], %d, v19", 62+2*r, 63+2*r, r)
    for r in range(4): a.e("v_mov_b32 v%d, 0x3f803f80", ONES+r)
    a.e("s_mul_i32 s5, s35, 36"); a.e("s_add_u32 s6, s5, s36"); a.e("s_add_u32 s6, s6, 4"); a.e("s_lshl_b32 s6, s6, 17")
    a.e("s_lshl_b32 s7, s34, 14"); a.e("s_lshl_b32 s8, s33, 12"); a.e("s_add_u32 s7, s7, s8"); a.e("s_add_u32 s7, s7, 0x%x", WS_HP)
    a.e("s_add_u32 s70, s6, s7")
    a.e("s_lshr_b32 s6, s36, 1"); a.e("s_add_u32 s6, s6, s5"); a.e("s_lshl_b32 s6, s6, 17"); a.e("s_add_u32 s71, s6, s7")
    a.e("s_and_b32 s6, s36, 1"); a.e("s_lshl_b32 s6, s6, 9"); a.e("s_add_u32 s71, s71, s6")
    a.e("s_mul_i32 s72, s39, %d", SLOT); a.e("s_sub_u32 s72, %d, s72", 2*SLOT)

    def wreads(st, n):
        g = 9*st + n; out = []
        for j in range(4):
            off = (st % 3)*SLOT + 4096*n + 1024*j
            r = 0
            if off >= 49152: r = 1; off -= 49152
            def f(j=j, r=r, off=off):
                a.e("ds_read_b128 %s, v%d offset:%d", vr(WB[g & 1] + 4*j, 4), RA[r], off); lg.push(("w", g))
            out.append(f)
        return out
    def xreads(p):
        out = []
        for tau in range(4):
            for h in range(2):
                def f(tau=tau, h=h):
                    a.e("ds_read_b64_tr_b16 %s, v%d offset:%d", xhalf(p, tau, h), TA+tau, (p % 3)*4096 + 2048*h); lg.push(("x", p))
                out.append(f)
        return out
    SUM = ACC[1] + 32; GRAM = ACC[1] + 48
    def mfmas(st, n):
        g = 9*st + n; out = []
        s = ACC[(st >> 1) & 1]
        for j in range(4):
            for tau in range(4):
                if st < 8:
                    p = 9*(st & 1) + n; d = s + 16*j + 4*tau; first = (p == 0)
                else:
                    p = 2*n + (j >> 1); d = s + 16*(j & 1) + 4*tau; first = (p == 0)
                out.append(E("v_mfma_f32_16x16x32_bf16 %s, %s, %s, %s", vr(d,4), vr(WB[g & 1]+4*j,4), xreg(p, tau), "0" if first else vr(d,4)))
        return out
    def statm(p):
        out = []
        for tau in range(4):
            out.append(E("v_mfma_f32_16x16x32_bf16 %s, %s, %s, %s", vr(SUM+4*tau,4), vr(ONES,4), xreg(p, tau), "0" if p == 0 else vr(SUM+4*tau,4)))
            out.append(E("v_mfma_f32_16x16x32_bf16 %s, %s, %s, %s", vr(GRAM+4*tau,4), xreg(p, tau), xreg(p, tau), "0" if p == 0 else vr(GRAM+4*tau,4)))
        return out
    def stats_final():
        o = []
        for tau in range(4):
            g = GRAM + 4*tau
            o.append(E("v_cndmask_b32 v%d, v%d, v%d, s[64:65]", R2+tau, g, g+1))
            o.append(E("v_cndmask_b32 v%d, v%d, v%d, s[66:67]", R2+tau, R2+tau, g+2))
            o.append(E("v_cndmask_b32 v%d, v%d, v%d, s[68:69]", R2+tau, R2+tau, g+3))
            o.append(E("v_mul_f32 v%d, %s, v%d", MEAN+tau, f32(1.0/576), SUM+4*tau))
        return o
    def stats_final2():
        o = []
        for tau in range(4):
            def f(tau=tau):
                a.e("ds_bpermute_b32 v%d, v%d, v%d", R2+tau, BP, R2+tau); lg.push("bp")
            o.append(f)
        return o
    def stats_final3():
        o = [lambda: lg.wait("bp")]
        R = lambda fmt: [E(fmt.replace("R", "v%d" % (R2+t)).replace("M", "v%d" % (MEAN+t))) for t in range(4)]
        o += R("v_mul_f32 R, %s, R" % f32(1.0/576))
        o += R("v_fma_f32 R, -M, M, R")
        o += R("v_max_f32 R, 0, R")
        o += R("v_cvt_pk_bf16_f32 R, R, M")
        o += R("v_and_b32 M, 0xffff0000, R")
        o += R("v_lshlrev_b32 R, 16, R")
        o += R("v_add_f32 R, %s, R" % f32(1e-5))
        o += R("v_cvt_pk_bf16_f32 R, R, R")
        o += R("v_lshlrev_b32 R, 16, R")
        o += R("v_sqrt_f32 R, R")
        o += R("v_cvt_pk_bf16_f32 R, R, R")
        o += R("v_lshlrev_b32 R, 16, R")
        o += R("v_rcp_f32 R, R")
        o += R("v_mul_f32 R, R, R")
        return o
    def epilogue(ps):
        s = ACC[ps & 1]; nc = 2 if ps < 4 else 1; o = []
        for c in range(nc):
            for m in range(2):
                def f(c=c, m=m):
                    a.e("ds_read_b128 %s, v%d offset:%d", vr(CSR + 8*c + 4*m, 4), CA, (2*ps + c)*128 + 64*m); lg.push(("cs", ps))
                o.append(f)
        o.append(lambda: lg.wait(("cs", ps)))
        for tau in range(4):
            for c in range(nc):
                gq = s + 32*c + 4*tau; uq = gq + 16
                for i in range(4): o.append(E("v_fma_f32 v%d, -v%d, v%d, v%d", gq+i, MEAN+tau, CSR+8*c+i, gq+i))
                for i in range(4): o.append(E("v_fma_f32 v%d, -v%d, v%d, v%d", uq+i, MEAN+tau, CSR+8*c+4+i, uq+i))
                for i in range(4): o.append(E("v_mul_f32 v%d, v%d, v%d", gq+i, R2+tau, gq+i))
                for i in range(4): o.append(E("v_mul_f32 v%d, v%d, v%d", gq+i, uq+i, gq+i))
                for i in range(2): o.append(E("v_cvt_pk_bf16_f32 v%d, v%d, v%d", HPK+4*tau+2*c+i, gq+2*i, gq+2*i+1))
            def f(tau=tau):
                if ps < 4: a.e("buffer_store_dwordx4 %s, v%d, s[28:31], s70 offen offset:%d sc1", vr(HPK+4*tau,4), L16, 1024*tau)
                else: a.e("buffer_store_dwordx2 %s, v%d, s[28:31], s71 offen offset:%d sc1", vr(HPK+4*tau,2), L8, 1024*tau)
                vm.push(("h", ps))
            o.append(f)
        if ps < 3: o.append(E("s_add_u32 s70, s70, %d", 8 << 17))
        return o
    bar = E("s_barrier")
    vm.wait([("x", 0), ("w", 0, 0), ("w", 0, 1)])
    a.e("s_barrier")
    T.stamp()
    run(xreads(0)); run(wreads(0, 0))
    wq = [(0, n) for n in range(4, 9)] + [(1, n) for n in range(9)]
    w2 = [(2, n) for n in range(9)]
    for p in range(18):
        st, n = p // 9, p % 9
        lg.wait_all()
        fill = []
        if p + 3 < 18: fill += xdma(p+3)
        if wq: fill += wdma(*wq.pop(0))
        elif w2:
            if len(w2) == 9: fill.append(E("v_add_u32 v%d, %d, v%d", WV, 2*SLOT, WV))
            for _ in range(3):
                if w2: fill += wdma(*w2.pop(0))
        if p == 2:
            fill += [lambda: vm.wait("cs"), E("v_add_f32 v32, v32, v34"), E("v_add_f32 v33, v33, v35"), E("v_add_u32 v2, %d, v2", CSL)]
            def f():
                a.e("ds_write_b64 v2, v[32:33]"); lg.push("csw")
            fill.append(f)
        if p < 17:
            q = p + 1
            fill.append(("at", 7))
            need = [("x", q)]
            if q % 2 == 0: need += [("w", q//9, q % 9), ("w", (q+1)//9, (q+1) % 9)]
            fill.append(lambda need=need: vm.wait(need))
            if q % 2 == 0: fill.append(bar)
            fill += xreads(q) + wreads(q//9, q % 9)
            anchors = mfmas(st, n)[:8] + statm(p) + mfmas(st, n)[8:]
        else:
            fill.append(("at", 10))
            fill.append(lambda: vm.wait([("w", 2, k) for k in range(9)]))
            fill.append(bar)
            fill += wreads(2, 0)
            fill += stats_final()
            anchors = statm(p) + mfmas(st, n)
        interleave(anchors, fill)
    pend = stats_final2() + [("gap",)] + stats_final3() + epilogue(0)
    for st in range(2, 9):
        if st in (2, 5): T.stamp()
        dl = []
        if st == 2: dl += [(3, n) for n in range(9)]
        if st + 2 <= 8: dl += [(st+2, n) for n in range(9)]
        if st >= 4 and st % 2 == 0:
            assert not pend
            pend = epilogue(st//2 - 1)
        steps_left = 18 if (st % 2 == 0 and st < 8) else 9
        for n in range(9):
            lg.wait(("w", 9*st + n))
            fill = []
            if n < 8: fill += wreads(st, n+1)
            elif st < 8:
                fill += [lambda st=st: vm.wait([("w", st+1, k) for k in range(9)]), bar] + wreads(st+1, 0)
            k = -(-len(dl) // max(1, (8 - n))) if n < 8 else 0
            k = min(k, 3)
            for _ in range(k):
                if dl:
                    t = dl.pop(0)
                    if t[1] == 0 and t[0] % 2 == 0:
                        fill.append(E("v_add_u32 v%d, %s, v%d", WV, ("%d" % (2*SLOT)) if t[0] < 8 else "s72", WV))
                    fill += wdma(*t)
            room = 29 - len(fill)
            want = min(room, -(-len(pend) // max(1, steps_left - n - 2)) if steps_left - n - 2 > 0 else len(pend))
            if n == 0 and st % 2 == 0: fill.append(("at", 4))
            while want > 0 and pend:
                x = pend.pop(0)
                if isinstance(x, tuple): break
                fill.append(x); want -= 1
            left = interleave(mfmas(st, n), fill)
            if left: print("k3: overflow fillers st %d n %d: %d" % (st, n, left))
        assert not dl
    assert not pend
    T.stamp()
    run(epilogue(4))
    T.stamp(); T.flush()
    a.label(name + "_end")
    a.e("s_endpgm")
    return finish(a, name, 512, 102, 256, verbose=False), (name, (256,1,1), (256,1,1), K3_LDS)
```

```python
from common import *
SLOT = 36864
NSL = 4
HL0 = NSL*SLOT
K4_LDS = HL0 + 12288
def hreg(k, tau, h=None):
    b = 8*k + 4*tau; kind = "a"
    if k >= 32: b = 224 + 8*(k-32) + 4*tau; kind = "v"
    return vr(b, 4, kind) if h is None else vr(b + 2*h, 2, kind)

def gen_k4(name="gemm2_kernel", rot=True, ts=False):
    a = Asm()
    kernel_header(a, name)
    vm = Q(a, "vmcnt", 63); lg = Q(a, "lgkmcnt", 15)
    E = lambda fmt, *x: (lambda: a.e(fmt, *x))
    def EM(fmt, *x):
        def f():
            a.e(fmt, *x); return 9
        return f
    def run(l):
        for x in l: x()
    T = Stamps(a, 3, on=ts, lg=lg); T.stamp()
    a.e("s_load_dwordx2 s[24:25], s[0:1], 120")
    a.e("s_load_dwordx2 s[26:27], s[0:1], 104")
    a.e("s_cmp_ge_u32 s2, 256")
    a.e("s_cbranch_scc1 %s_end", name)
    ACC = 32
    WB = [104, 140]
    HR = 176
    PK = 188
    L16, L8, WV, WV0, HV, HV8 = 2, 3, 4, 5, 6, 7
    RA = [8, 9, 10]
    TR, OA, OA8, FA = 11, 12, 13, 14
    a.e("v_lshrrev_b32 v4, 6, v0")
    a.e("v_and_b32 v1, 63, v0")
    a.e("v_readfirstlane_b32 s33, v4")
    a.e("s_and_b32 s3, s2, 7")
    a.e("s_lshr_b32 s4, s2, 3")
    a.e("s_lshr_b32 s35, s3, 1")
    a.e("s_and_b32 s5, s3, 1"); a.e("s_lshl_b32 s5, s5, 3"); a.e("s_and_b32 s6, s4, 7"); a.e("s_add_u32 s34, s5, s6")
    a.e("s_lshr_b32 s36, s4, 3")
    if rot:
        a.e("s_lshl_b32 s5, s36, 1"); a.e("s_add_u32 s38, s5, s6")
    else: a.e("s_mov_b32 s38, 0")
    ST = 40
    for n in range(8):
        a.e("s_add_u32 s5, s38, %d", n); a.e("s_and_b32 s5, s5, 7"); a.e("s_add_u32 s%d, s5, 1", ST+n)
    a.e("s_mov_b32 s%d, 0", ST+8)
    DT = 50
    a.e("s_lshl_b32 s7, s35, 1")
    for n in range(8):
        a.e("s_add_u32 s5, s7, %d", n); a.e("s_and_b32 s5, s5, 7"); a.e("s_lshl_b32 s%d, s5, 10", DT+n)
    a.e("s_movk_i32 s%d, 8192", DT+8)
    a.e("v_lshlrev_b32 v%d, 4, v1", L16)
    a.e("v_lshlrev_b32 v%d, 3, v1", L8)
    a.e("s_mul_i32 s5, s36, 144"); a.e("s_mul_i32 s37, s35, 36"); a.e("s_add_u32 s5, s5, s37"); a.e("s_add_u32 s5, s5, s33")
    a.e("s_mul_i32 s5, s5, 9216"); a.e("s_add_u32 s5, s5, 0x%x", WS_WP2)
    a.e("v_add_u32 v%d, s5, v%d", WV0, L16)
    a.e("s_lshl_b32 s5, s37, 17"); a.e("s_lshl_b32 s6, s34, 13"); a.e("s_add_u32 s5, s5, s6"); a.e("s_lshl_b32 s6, s33, 11"); a.e("s_add_u32 s5, s5, s6")
    a.e("s_add_u32 s5, s5, 0x%x", WS_HP)
    a.e("v_add_u32 v%d, s5, v%d", HV, L16)
    a.e("v_add_u32 v%d, s5, v%d", HV8, L8)
    a.e("s_mul_i32 s59, s33, 9216")
    a.e("s_waitcnt lgkmcnt(0)")
    srd(a, 28, 24, WS_SIZE)
    def loads(n):
        o = [E("s_mul_i32 s60, s%d, %d", ST+n, SLOT), E("v_add_u32 v%d, s60, v%d", WV, WV0), E("s_lshl_b32 s61, s%d, 19", ST+n)]
        wl = []
        for i in range(9):
            def f(i=i):
                a.e("buffer_load_dwordx4 v%d, s[28:31], s%d offen lds", WV, DT+i); vm.push(("w", n))
            wl.append([EM("s_add_u32 m0, s59, %d", (n % NSL)*SLOT + 1024*i), f])
        hl = []
        for ks in range(4):
            k = 4*n + ks; g = []
            for tau in range(2):
                if n < 8:
                    def f(k=k, tau=tau):
                        a.e("buffer_load_dwordx4 %s, v%d, s[28:31], s61 offen offset:%d", hreg(k, tau), HV, 1024*tau); vm.push(("h", k))
                    g.append(f)
                else:
                    for h in range(2):
                        def f(k=k, tau=tau, h=h):
                            a.e("buffer_load_dwordx2 %s, v%d, s[28:31], s61 offen offset:%d", hreg(k, tau, h), HV8, 1024*tau + 512*h); vm.push(("h", k))
                        g.append(f)
            if ks < 3: g.append(E("s_add_u32 s61, s61, 0x20000"))
            hl.append(g)
        for x in wl: o += x
        for x in hl: o += x
        return o
    run(loads(0)); run(loads(1))
    a.e("v_lshrrev_b32 v15, 2, v1")
    a.e("v_and_b32 v16, 3, v1")
    a.e("v_lshlrev_b32 v17, 4, v16")
    a.e("v_lshl_add_u32 v17, v15, 12, v17")
    a.e("s_mul_i32 s5, s36, %d", 144*4096); a.e("s_lshl_b32 s6, s34, 8"); a.e("s_add_u32 s5, s5, s6"); a.e("s_lshl_b32 s6, s33, 6"); a.e("s_add_u32 s5, s5, s6")
    a.e("s_add_u32 s5, s5, 0x%x", WS_HT)
    a.e("v_add_u32 v17, s5, v17")
    a.e("s_mul_i32 s62, s33, 3072"); a.e("s_add_u32 s62, s62, %d", HL0)
    for i, n in enumerate((0, 1, 8)):
        a.e("s_add_u32 m0, s62, %d", 1024*i)
        a.e("s_lshl_b32 s5, s%d, 6", DT+n)
        a.e("buffer_load_dwordx4 v17, s[28:31], s5 offen lds"); vm.push("res")
    a.e("v_lshlrev_b32 v16, 3, v16")
    a.e("v_lshl_add_u32 v16, v15, 6, v16")
    a.e("v_add_u32 v%d, s62, v16", TR)
    run(loads(2))
    for r in range(3): a.e("v_add_u32 v%d, %d, v%d", RA[r], 49152*r, L16)
    a.e("v_and_b32 v15, 15, v0")
    a.e("v_bfe_u32 v16, v0, 4, 1")
    a.e("v_bfe_u32 v17, v0, 5, 1")
    a.e("s_movk_i32 s5, 1152")
    a.e("v_lshlrev_b32 v17, 4, v17")
    a.e("v_mad_u32_u24 v17, v15, s5, v17")
    a.e("v_lshl_add_u32 v%d, v16, 5, v17", OA)
    a.e("v_mul_u32_u24 v16, %d, v16", 16*1152)
    a.e("v_add_u32 v%d, v16, v17", OA8)
    a.e("s_lshl_b32 s5, s34, 2"); a.e("s_add_u32 s5, s5, s33"); a.e("s_mul_i32 s5, s5, %d", 32*1152)
    a.e("s_mul_i32 s6, s36, 288"); a.e("s_add_u32 s63, s5, s6")
    a.e("s_lshl_b32 s6, s35, 6"); a.e("s_add_u32 s64, s63, s6")
    a.e("s_add_u32 s65, s64, %d", 16*1152)
    srd(a, 76, 26, 2048*576*2)
    a.e("s_lshl_b32 s5, s34, 2"); a.e("s_add_u32 s5, s5, s36")
    a.e("s_lshl_b32 s6, s5, 2"); a.e("s_add_u32 s6, s6, s33"); a.e("s_lshl_b32 s66, s6, 7"); a.e("s_add_u32 s66, s66, 0x%x", WS_FLAG)
    a.e("s_mul_i32 s5, s5, %d", 16*9216); a.e("s_mul_i32 s6, s33, 9216"); a.e("s_add_u32 s5, s5, s6"); a.e("s_add_u32 s5, s5, 0x%x", WS_PART)
    for j in range(4):
        a.e("s_add_u32 s6, s35, %d", j); a.e("s_and_b32 s6, s6, 3"); a.e("s_mul_i32 s6, s6, %d", 4*9216); a.e("s_add_u32 s%d, s5, s6", 68+j)
        if j > 1: a.e("s_add_u32 s%d, s%d, %d", 68+j, 68+j, (j-1)*3072)
    a.e("s_sub_u32 s73, s33, s35"); a.e("s_and_b32 s73, s73, 3")
    a.e("s_mul_i32 s6, s33, %d", 4*9216); a.e("s_add_u32 s72, s5, s6"); a.e("s_mul_i32 s6, s73, 3072"); a.e("s_add_u32 s72, s72, s6"); a.e("s_sub_u32 s72, s72, 1024")
    a.e("v_and_b32 v%d, 3, v0", FA); a.e("v_lshlrev_b32 v%d, 2, v%d", FA, FA)
    a.e("s_mov_b32 s74, 0xffff0000")
    def wreads(k):
        n, ks = k//4, k % 4; o = []
        for i in range(9):
            off = (n % NSL)*SLOT + ks*9216 + 1024*i
            r = off // 49152; off -= 49152*r
            def f(i=i, r=r, off=off):
                a.e("ds_read_b128 %s, v%d offset:%d", vr(WB[k & 1] + 4*i, 4), RA[r], off); lg.push(("w", k))
            o.append(f)
        return o
    def mfmas(k):
        o = []
        for i in range(9):
            for tau in range(2):
                d = ACC + 8*i + 4*tau
                o.append(E("v_mfma_f32_16x16x32_bf16 %s, %s, %s, %s", vr(d,4), vr(WB[k & 1]+4*i,4), hreg(k, tau), "0" if k == 0 else vr(d,4)))
        return o
    vm.wait(("w", 0))
    a.e("s_barrier")
    T.stamp()
    run(wreads(0))
    dl = loads(3)
    for k in range(36):
        n, ks = k//4, k % 4
        if k == 16: T.stamp()
        vm.wait(("h", k))
        lg.wait(("w", k))
        fill = []
        if ks == 3 and n < 8:
            fill += [lambda n=n: vm.wait(("w", n+1)), E("s_barrier")]
        if k < 35: fill += wreads(k+1)
        if ks == 3:
            assert not dl
            if n + 4 <= 8: dl = loads(n+4)
        if k == 8:
            for i in range(3):
                for tau in range(2):
                    def f(i=i, tau=tau):
                        a.e("ds_read_b64_tr_b16 %s, v%d offset:%d", vr(HR+4*i+2*tau,2), TR, 1024*i + 32*tau); lg.push("res")
                    fill.append(f)
            assert vm.count("res") is None
        left = {3: 4, 0: 3, 1: 2, 2: 1}[ks]
        m = -(-len(dl)//left)
        fill += dl[:m]; dl = dl[m:]
        ov = interleave(mfmas(k), fill)
        if ov: print("k4 overflow", k, ov)
    T.stamp()
    for i in range(2, 9):
        q = PK + 4*(i-2)
        for r in range(4): a.e("v_cvt_pk_bf16_f32 v%d, v%d, v%d", q+r, ACC+8*i+2*r, ACC+8*i+2*r+1)
        if i < 8:
            a.e("buffer_store_dwordx4 %s, v%d, s[28:31], s%d offen offset:%d sc1", vr(q,4), L16, 68 + i//2, 1024*(i & 1))
    a.e("s_cmp_eq_u32 s73, 0")
    a.e("s_cbranch_scc1 %s_own8", name)
    a.e("buffer_store_dwordx4 %s, v%d, s[28:31], s72 offen sc1", vr(PK+24,4), L16)
    a.label(name + "_own8")
    def addpk(dst, src):
        for r in range(4):
            a.e("v_lshlrev_b32 v15, 16, v%d", src+r)
            a.e("v_and_b32 v16, s74, v%d", src+r)
            a.e("v_add_f32 v%d, v%d, v15", dst+2*r, dst+2*r)
            a.e("v_add_f32 v%d, v%d, v16", dst+2*r+1, dst+2*r+1)
    for i, n in enumerate((0, 1, 8)): addpk(ACC+8*n, HR+4*i)
    a.e("v_mov_b32 v17, 1")
    a.e("s_lshl_b32 s5, s35, 2")
    a.e("v_mov_b32 v18, s5")
    a.e("s_mov_b32 s75, 0x100000")
    a.e("s_waitcnt vmcnt(0)")
    T.stamp()
    a.e("s_mov_b64 exec, 1")
    a.e("buffer_store_dword v17, v18, s[28:31], s66 offen sc1")
    a.e("s_mov_b64 exec, -1")
    a.label(name + "_poll")
    a.e("buffer_load_dword v17, v%d, s[28:31], s66 offen sc1", FA)
    a.e("s_sub_u32 s75, s75, 1")
    a.e("s_cbranch_scc1 %s_go", name)
    a.e("s_waitcnt vmcnt(0)")
    a.e("v_cmp_eq_u32 vcc, 0, v17")
    a.e("s_cbranch_vccnz %s_poll", name)
    a.label(name + "_go")
    T.stamp()
    IN = 104
    a.e("s_add_u32 s5, s68, 3072"); a.e("s_add_u32 s6, s68, 6144")
    SO = ["s68", "s5", "s6"]
    a.e("s_cmp_lg_u32 s73, 0")
    a.e("s_cbranch_scc1 %s_no8", name)
    for jj in range(3):
        a.e("buffer_load_dwordx4 %s, v%d, s[28:31], %s offen offset:2048 sc1", vr(IN+24+4*jj,4), L16, SO[jj])
    a.label(name + "_no8")
    for it in range(2):
        for jj in range(3):
            a.e("buffer_load_dwordx4 %s, v%d, s[28:31], %s offen offset:%d sc1", vr(IN+12*it+4*jj,4), L16, SO[jj], 1024*it)
    for it in range(2):
        for jj in range(3):
            a.e("s_waitcnt vmcnt(%d)", 5 - 3*it - jj)
            addpk(ACC+8*it, IN+12*it+4*jj)
    for tau in range(2):
        o = 24 + 4*tau
        for it in range(2):
            for r in range(2): a.e("v_cvt_pk_bf16_f32 v%d, v%d, v%d", o+2*it+r, ACC+8*it+4*tau+2*r, ACC+8*it+4*tau+2*r+1)
        a.e("v_permlane16_swap_b32 v%d, v%d", o, o+2)
        a.e("v_permlane16_swap_b32 v%d, v%d", o+1, o+3)
        a.e("buffer_store_dwordx4 %s, v%d, s[76:79], s%d offen", vr(o,4), OA, 64+tau)
    a.e("s_cmp_lg_u32 s73, 0")
    a.e("s_cbranch_scc1 %s_fin", name)
    for jj in range(3): addpk(ACC+64, IN+24+4*jj)
    for r in range(4): a.e("v_cvt_pk_bf16_f32 v%d, v%d, v%d", 20+r, ACC+64+2*r, ACC+64+2*r+1)
    a.e("v_permlane16_swap_b32 v20, v22")
    a.e("v_permlane16_swap_b32 v21, v23")
    a.e("buffer_store_dwordx4 v[20:23], v%d, s[76:79], s63 offen offset:256", OA8)
    a.label(name + "_fin")
    T.stamp(); T.flush()
    a.label(name + "_end")
    a.e("s_endpgm")
    return finish(a, name, 512, 102, 256, verbose=False), (name, (256,1,1), (256,1,1), K4_LDS)
```

```python
from common import *
def gen_empty(name="empty_kernel"):
    a = Asm(); kernel_header(a, name); a.e("s_endpgm")
    return finish(a, name, 8, 16), (name, (1,1,1), (64,1,1), 0)
def gen_chase(name, argoff, base, stride, n):
    a = Asm(); kernel_header(a, name)
    a.e("s_load_dwordx2 s[4:5], s[0:1], %d", argoff)
    a.e("s_cmp_ge_u32 s2, 1"); a.e("s_cbranch_scc1 %s_end", name)
    a.e("v_mov_b32 v1, 0x%x", base)
    a.e("s_mov_b32 s6, %d", n)
    a.e("s_waitcnt lgkmcnt(0)")
    a.label(name + "_l")
    a.e("global_load_dword v2, v1, s[4:5]")
    a.e("v_add_u32 v1, %d, v1", stride)
    a.e("s_waitcnt vmcnt(0)")
    a.e("s_sub_u32 s6, s6, 1"); a.e("s_cmp_lg_u32 s6, 0"); a.e("s_cbranch_scc1 %s_l", name)
    a.label(name + "_end"); a.e("s_endpgm")
    return finish(a, name, 8, 16), (name, (1,1,1), (64,1,1), 0)
def gen_stream(name, argoff, base, per_wg, nwg=256):
    a = Asm(); kernel_header(a, name)
    a.e("s_load_dwordx2 s[4:5], s[0:1], %d", argoff)
    a.e("s_cmp_ge_u32 s2, %d", nwg); a.e("s_cbranch_scc1 %s_end", name)
    a.e("s_mul_i32 s3, s2, %d", per_wg); a.e("s_add_u32 s3, s3, 0x%x", base)
    a.e("v_lshl_add_u32 v1, v0, 4, s3")
    a.e("s_mov_b32 s6, %d", per_wg // 4096)
    a.e("s_waitcnt lgkmcnt(0)")
    a.label(name + "_l")
    a.e("global_load_dwordx4 v[4:7], v1, s[4:5]")
    a.e("v_add_u32 v1, 4096, v1")
    a.e("s_waitcnt vmcnt(16)")
    a.e("s_sub_u32 s6, s6, 1"); a.e("s_cmp_lg_u32 s6, 0"); a.e("s_cbranch_scc1 %s_l", name)
    a.e("s_waitcnt vmcnt(0)")
    a.label(name + "_end"); a.e("s_endpgm")
    return finish(a, name, 8, 16), (name, (nwg,1,1), (256,1,1), 0)
```

```python
from build import *
from k1 import *
from k2 import *
from k3 import *
from k4 import *
from probes import *
base = [gen_k1(), gen_k2(), gen_k3(), gen_k4()]
e = gen_empty()
assemble(base, "p0.s")
assemble(base + [e]*8, "p1.s")
assemble(base + [gen_chase("chase_kernel", 72, 0, 16384+128, 100)], "p2.s")
assemble(base + [gen_chase("chase_kernel", 120, 0x4000000, 16384+128, 100)], "p3.s")
assemble(base + [gen_chase("chase_kernel", 120, 0xF000000, 16384+128, 100)], "p4.s")
assemble([gen_stream("stream_kernel", 120, 0x8000000, 131072)] + base, "p5.s")
for i in range(6): check("p%d.s" % i)
```

```python
from build import *
from k1 import *
from k2 import *
from k3 import *
from k4 import *
assemble([gen_k1(), gen_k2(), gen_k3(), gen_k4()], "t4.s")
check("t4.s")
assemble([gen_k1(ts=True), gen_k2(ts=True), gen_k3(ts=True), gen_k4(ts=True)], "t4ts.s")
check("t4ts.s")
```
